```python
import torch

def _softmax(x, axis=-1):
    return torch.softmax(x, dim=axis)
def _gelu(x):
    return torch.nn.functional.gelu(x, approximate="tanh")
def _silu(x):
    return torch.nn.functional.silu(x)
def _sigmoid(x):
    return torch.sigmoid(x)
def _layernorm(x, axis=-1, eps=1e-5):
    m = x.mean(dim=axis, keepdim=True)
    v = x.var(dim=axis, keepdim=True, unbiased=False)
    return (x - m) / torch.sqrt(v + eps)
def _scatter_add(tgt, idx, src, axis=0):
    return tgt.clone().index_add_(axis, idx, src)
def _segment_sum(src, seg, n):
    out = torch.zeros((n,) + src.shape[1:], dtype=src.dtype)
    return out.index_add_(0, seg, src)
def _pad(x, pw):
    flat = tuple(v for pair in reversed(pw) for v in pair)
    return torch.nn.functional.pad(x, flat)

kernel_name = 'parallel_sum__ssm_conv_s4d__mixer_token_mlp__prompt'

def setup_inputs():

    _w = (lambda a: (lambda t: t.to(torch.bfloat16) if t.is_floating_point() else t)(torch.as_tensor(a)))
    def _A_setup():
        Bsz, L, D, N = 1, 2048, 512, 128
        return {
            "u": _w((lambda *s: torch.randn(*s, dtype=torch.bfloat16) * 0.05)(Bsz, L, D)),
            "log_A_real": _w((lambda *s: torch.randn(*s, dtype=torch.bfloat16) * 3.2)(D, N) * 0.5),
            "A_imag": _w((lambda *s: torch.randn(*s, dtype=torch.bfloat16) * 0.05)(D, N) * 3.14),
            "C_real": _w((lambda *s: torch.randn(*s, dtype=torch.bfloat16) * 0.2)(D, N) / N ** 0.5),
            "C_imag": _w((lambda *s: torch.randn(*s, dtype=torch.bfloat16) * 0.4)(D, N) / N ** 0.5),
            "log_dt": _w((lambda *s: torch.randn(*s, dtype=torch.bfloat16) * 0.05)(D) * 0.5 - 4.0),
            "D_skip": _w((lambda *s: torch.randn(*s, dtype=torch.bfloat16) * 0.05)(D)),
        }
    _A_in = _A_setup()

    def _B_setup():
        B, S, D, F = 1, 2048, 512, 1792
        return {
            "x": _w((lambda *s: torch.randn(*s, dtype=torch.bfloat16) * 0.05)(B, S, D)),
            "w1": _w((lambda *s: torch.randn(*s, dtype=torch.bfloat16) * 0.8)(S, F) * (S ** -0.5)),
            "b1": _w((lambda *s: torch.randn(*s, dtype=torch.bfloat16) * 3.2)(F) * 0.02),
            "w2": _w((lambda *s: torch.randn(*s, dtype=torch.bfloat16) * 0.8)(F, S) * (F ** -0.5)),
            "b2": _w((lambda *s: torch.randn(*s, dtype=torch.bfloat16) * 3.2)(S) * 0.02),
        }
    _B_in = _B_setup()

    return {
        "A_u": _A_in["u"],
        "A_log_A_real": _A_in["log_A_real"],
        "A_A_imag": _A_in["A_imag"],
        "A_C_real": _A_in["C_real"],
        "A_C_imag": _A_in["C_imag"],
        "A_log_dt": _A_in["log_dt"],
        "A_D_skip": _A_in["D_skip"],
        "B_x": _B_in["x"],
        "B_w1": _B_in["w1"],
        "B_b1": _B_in["b1"],
        "B_w2": _B_in["w2"],
        "B_b2": _B_in["b2"],
    }

def reference(A_u, A_log_A_real, A_A_imag, A_C_real, A_C_imag, A_log_dt, A_D_skip, B_x, B_w1, B_b1, B_w2, B_b2):
    def _A_ref(u, log_A_real, A_imag, C_real, C_imag, log_dt, D_skip):
        L = u.shape[1]
        dt = torch.exp(log_dt)
        A = -torch.exp(log_A_real) + 1j * A_imag
        C = (C_real + 1j * C_imag) * dt[:, None]
        pos = (lambda x, dt: x.to(dt))(torch.arange(L), log_dt.dtype)
        P = torch.exp((A * dt[:, None])[:, :, None] * pos[None, None, :])
        K = 2.0 * torch.einsum("dn,dnl->dl", C, P).real
        L2 = 2 * L
        u_t = (lambda x, *d: x.permute(*d))(u, 0, 2, 1)
        Kf = (lambda x, *a, **k: torch.fft.rfft(x.float(), *a, **k))(K, L2)
        Uf = (lambda x, *a, **k: torch.fft.rfft(x.float(), *a, **k))(u_t, L2)
        y = (lambda x, *a, **k: torch.fft.irfft(x, *a, **k).to(torch.bfloat16))(Uf * Kf[None, :, :], L2)[:, :, :L]
        y = (lambda x, *d: x.permute(*d))(y, 0, 2, 1)
        return y + u * D_skip[None, None, :]

    def _B_ref(x, w1, b1, w2, b2):
        B, S, D = x.shape
        h = _layernorm(x, axis=-1)
        u = torch.einsum("bsd,sf->bdf", h, w1) + b1
        u = _gelu(u)
        y = torch.einsum("bdf,fs->bds", u, w2) + b2
        return (lambda x, *d: x.permute(*d))(y, 0, 2, 1)

    x = A_u
    xn = _layernorm(x, axis=-1)
    return x + _A_ref(xn, A_log_A_real, A_A_imag, A_C_real, A_C_imag, A_log_dt, A_D_skip) + _B_ref(xn, B_w1, B_b1, B_w2, B_b2)
```

```python
import re

TRANS = {"v_exp_f32", "v_log_f32", "v_rcp_f32", "v_rsq_f32", "v_sqrt_f32", "v_sin_f32", "v_cos_f32",
         "v_rcp_iflag_f32"}


def _regs(tok):
    tok = tok.strip()
    tok = tok.lstrip("-")
    m = re.fullmatch(r"\|?(?:abs\()?([vsa])(\d+)\)?\|?", tok)
    if m:
        return m.group(1), [int(m.group(2))]
    m = re.fullmatch(r"\|?(?:abs\()?([vsa])\[(\d+):(\d+)\]\)?\|?", tok)
    if m:
        return m.group(1), list(range(int(m.group(2)), int(m.group(3)) + 1))
    if tok in ("vcc", "vcc_lo", "vcc_hi"):
        return "x", ["vcc"]
    if tok in ("exec", "exec_lo", "exec_hi"):
        return "x", ["exec"]
    if tok == "m0":
        return "x", ["m0"]
    return None


class Ins:
    __slots__ = ("text", "op", "ops", "vw", "vr", "sw", "sr", "cls", "dpp", "ws", "mfc")

    def __init__(self, text):
        self.text = text
        t = text.split(";")[0].strip()
        parts = t.split(None, 1)
        self.op = parts[0]
        rest = parts[1] if len(parts) > 1 else ""
        ops = []
        cur = ""
        depth = 0
        for ch in rest:
            if ch == "[":
                depth += 1
            if ch == "]":
                depth -= 1
            if ch == "," and depth == 0:
                ops.append(cur.strip())
                cur = ""
            else:
                cur += ch
        if cur.strip():
            ops.append(cur.strip())
        mods = []
        if ops:
            last = ops[-1].split()
            ops[-1] = last[0]
            mods = last[1:]
        self.ops = ops
        self.dpp = any(m.startswith(("row_", "quad_perm", "wave_")) for m in mods) or "_dpp" in self.op
        self.vw, self.vr, self.sw, self.sr = set(), set(), set(), set()
        self.mfc = set()
        self.ws = 1
        op = self.op
        base = re.sub(r"_(e32|e64|dpp|sdwa)$", "", op)
        self.cls = "other"

        def add(tok, w):
            r = _regs(tok)
            if not r:
                return
            k, idx = r
            if k in ("v", "a"):
                (self.vw if w else self.vr).update((k, i) for i in idx)
            else:
                (self.sw if w else self.sr).update(idx if k == "x" else [("s", i) for i in idx])

        if op == "s_nop":
            self.ws = int(ops[0], 0) + 1
            self.cls = "nop"
        elif op.startswith("v_mfma"):
            self.cls = "mfma"
            add(ops[0], True)
            for o in ops[1:]:
                add(o, False)
            r = _regs(ops[3])
            if r and r[0] in "va":
                self.mfc = {(r[0], i) for i in r[1]}
        elif op.startswith("v_"):
            self.cls = "trans" if base in TRANS else "valu"
            if base.startswith("v_cmp"):
                add(ops[0], True)
                for o in ops[1:]:
                    add(o, False)
            elif base in ("v_readlane_b32", "v_readfirstlane_b32"):
                add(ops[0], True)
                for o in ops[1:]:
                    add(o, False)
            elif base.startswith("v_permlane") and "swap" in base:
                for o in ops[:2]:
                    add(o, True)
                    add(o, False)
            else:
                add(ops[0], True)
                for o in ops[1:]:
                    add(o, False)
                if base in ("v_fmac_f32", "v_pk_fmac_f16", "v_fmac_f16"):
                    add(ops[0], False)
                if base == "v_cndmask_b32" and len(ops) == 3:
                    self.sr.add("vcc")
                if base in ("v_add_co_u32", "v_sub_co_u32", "v_addc_co_u32", "v_subb_co_u32"):
                    add(ops[1], True)
            self.sr.add("exec")
        elif op.startswith("s_"):
            self.cls = "salu"
            if op.startswith(("s_cmp", "s_cbranch", "s_branch", "s_waitcnt", "s_barrier", "s_endpgm",
                              "s_setprio", "s_sleep", "s_bitcmp")):
                for o in ops:
                    add(o, False)
            elif op.startswith(("s_load", "s_buffer_load")):
                self.cls = "smem"
                add(ops[0], True)
                for o in ops[1:]:
                    add(o, False)
            else:
                add(ops[0], True)
                for o in ops[1:]:
                    add(o, False)
                if "saveexec" in op:
                    self.sw.add("exec")
        elif op.startswith(("buffer_", "global_", "flat_")):
            self.cls = "vmem"
            is_lds = " lds" in (" " + t + " ").replace(" lds ", " lds ") and re.search(r"\blds\b", t)
            if "store" in op or "atomic" in op:
                for o in ops:
                    add(o, False)
            elif is_lds or "load_lds" in op:
                for o in ops:
                    add(o, False)
                self.sr.add("m0")
            else:
                add(ops[0], True)
                for o in ops[1:]:
                    add(o, False)
        elif op.startswith("ds_"):
            self.cls = "ds"
            if op.startswith(("ds_write", "ds_add", "ds_max", "ds_min")) and "rtn" not in op:
                for o in ops:
                    add(o, False)
            else:
                add(ops[0], True)
                for o in ops[1:]:
                    add(o, False)


def mfma_passes(op):
    if "32x32x16" in op or "32x32x8" in op:
        return 8
    if "16x16x32" in op or "16x16x16" in op:
        return 4
    raise ValueError(op)


_D_RD = {4: 8, 8: 12}
_D_OVL = {4: 6, 8: 10}
_C_WAR = {4: 3, 8: 7}


def need(p, c):
    n = 0
    pv = p.cls in ("valu", "trans")
    if pv and p.vw:
        if c.cls == "mfma" and (p.vw & c.vr):
            n = max(n, 2)
        if c.dpp and (p.vw & c.vr):
            n = max(n, 2)
        if c.op.startswith(("v_readlane", "v_readfirstlane")) and (p.vw & c.vr):
            n = max(n, 1)
        if c.op.startswith("v_permlane") and (p.vw & c.vr):
            n = max(n, 2)
        if p.cls == "trans" and c.cls == "valu" and (p.vw & c.vr):
            n = max(n, 1)
        if p.cls == "trans" and c.cls in ("mfma",) and (p.vw & c.vr):
            n = max(n, 2)
    if pv and p.sw:
        s = {x for x in p.sw if x != "exec"}
        if s:
            if c.cls in ("valu", "trans", "mfma") and (s & c.sr):
                n = max(n, 4 if c.op.startswith(("v_readlane", "v_writelane")) else 2)
            if c.cls == "vmem" and (s & c.sr):
                n = max(n, 5)
    if p.cls == "salu" and "m0" in p.sw and c.cls == "vmem" and "m0" in c.sr:
        n = max(n, 1)
    if p.cls == "mfma":
        ps = mfma_passes(p.op)
        if c.cls == "mfma":
            cab = set()
            for o in c.ops[1:3]:
                r = _regs(o)
                if r and r[0] in "va":
                    cab |= {(r[0], i) for i in r[1]}
            if p.vw & cab:
                n = max(n, _D_RD[ps])
            if p.vw & c.mfc:
                if not (p.vw == c.mfc and mfma_passes(c.op) == ps):
                    n = max(n, _D_OVL[ps])
            elif p.vw & c.vw:
                n = max(n, _D_OVL[ps])
        else:
            if p.vw & (c.vr | c.vw):
                n = max(n, _D_RD[ps])
            if c.cls in ("valu", "trans") and (p.mfc & c.vw):
                n = max(n, _C_WAR[ps])
    if p.cls == "vmem" and "store" in p.op and ("x3" in p.op or "x4" in p.op):
        if p.vr & c.vw:
            n = max(n, 2 if c.cls in ("valu", "trans", "mfma") else 1)
    if p.cls == "ds" and p.op.startswith("ds_write") and ("b128" in p.op or "b96" in p.op):
        pass
    return n


class Asm:
    def __init__(self):
        self.lines = []

    def i(self, s):
        self.lines.append("    " + s)

    def raw(self, s):
        self.lines.append(s)

    def label(self, s):
        self.lines.append(s + ":")

    def c(self, s):
        self.lines.append("    ; " + s)

    def text(self):
        return "\n".join(self.lines) + "\n"


def hazard_pass(text, window=24):
    out = []
    hist = []
    ninserted = 0
    for line in text.split("\n"):
        s = line.strip()
        if (not s) or s.startswith(";") or s.startswith(".") or s.endswith(":") or s.startswith("//"):
            out.append(line)
            continue
        if not line.startswith("    "):
            out.append(line)
            continue
        ins = Ins(s)
        req = 0
        dist = 0
        for p in reversed(hist):
            nd = need(p, ins)
            if nd > dist:
                req = max(req, nd - dist)
            dist += p.ws
            if dist > window:
                break
        if req > 0:
            k = req
            while k > 0:
                m = min(k, 16)
                out.append("    s_nop %d" % (m - 1))
                hist.append(Ins("s_nop %d" % (m - 1)))
                k -= m
            ninserted += 1
        out.append(line)
        hist.append(ins)
        if len(hist) > 64:
            hist = hist[-64:]
    return "\n".join(out), ninserted
```

```python
import sys, os
sys.path.insert(0, os.path.dirname(__file__))
from asmlib import Asm, hazard_pass

S, D, F, N = 2048, 512, 1792, 128
MB = 1 << 20
WS_XC, WS_XNC, WS_HC, WS_G, WS_KF, WS_KS, WS_T = 0, 2 * MB, 4 * MB, 6 * MB, 8 * MB, 10 * MB, 11 * MB
SZ_ACT = S * D * 2
SZ_G = F * D * 2
LOG2E = 0x3fb8aa3b
INV2PI = 0x3e22f983

KA_X, KA_LAR, KA_AIM, KA_CR, KA_CI, KA_LDT, KA_DSK, KA_BX, KA_W1, KA_B1, KA_W2, KA_B2, KA_OUT, KA_DBG, KA_WS = \
    [8 * i for i in range(15)]


def srd(a, dst, ptr, off, size):
    if off:
        a.i(f"s_add_u32 s{dst}, s{ptr}, 0x{off:x}")
        a.i(f"s_addc_u32 s{dst+1}, s{ptr+1}, 0")
        a.i(f"s_and_b32 s{dst+1}, s{dst+1}, 0xffff")
    else:
        a.i(f"s_mov_b32 s{dst}, s{ptr}")
        a.i(f"s_and_b32 s{dst+1}, s{ptr+1}, 0xffff")
    a.i(f"s_mov_b32 s{dst+2}, 0x{size:x}")
    a.i(f"s_mov_b32 s{dst+3}, 0x00020000")


def dpp_sum(a, regs, op="v_add_f32"):
    steps = ["quad_perm:[1,0,3,2] row_mask:0xf bank_mask:0xf",
             "quad_perm:[2,3,0,1] row_mask:0xf bank_mask:0xf",
             "row_half_mirror row_mask:0xf bank_mask:0xf",
             "row_mirror row_mask:0xf bank_mask:0xf",
             "row_bcast:15 row_mask:0xa bank_mask:0xf",
             "row_bcast:31 row_mask:0xc bank_mask:0xf"]
    for st in steps:
        for r in regs:
            a.i(f"{op}_dpp v{r}, v{r}, v{r} {st}")


def bf16r(a, dst, src, tmp):
    a.i(f"v_cvt_pk_bf16_f32 v{tmp}, v{src}, v{src}")
    a.i(f"v_lshlrev_b32 v{dst}, 16, v{tmp}")


def bf16r_pair(a, d0, d1, s0, s1, tmp):
    a.i(f"v_cvt_pk_bf16_f32 v{tmp}, v{s0}, v{s1}")
    a.i(f"v_lshlrev_b32 v{d0}, 16, v{tmp}")
    a.i(f"v_and_b32 v{d1}, 0xffff0000, v{tmp}")


K0_LN_WGS = 64
K0_KC_WGS = 512
K0_LDS = 20480


def emit_k0(a):
    a.raw(".globl k0_kernel")
    a.raw(".p2align 8")
    a.raw(".type k0_kernel,@function")
    a.label("k0_kernel")
    a.i("s_load_dwordx2 s[4:5], s[0:1], %d" % KA_X)
    a.i("s_load_dwordx2 s[6:7], s[0:1], %d" % KA_LAR)
    a.i("s_load_dwordx2 s[8:9], s[0:1], %d" % KA_AIM)
    a.i("s_load_dwordx2 s[10:11], s[0:1], %d" % KA_CR)
    a.i("s_load_dwordx2 s[12:13], s[0:1], %d" % KA_CI)
    a.i("s_load_dwordx2 s[14:15], s[0:1], %d" % KA_LDT)
    a.i("s_load_dwordx2 s[16:17], s[0:1], %d" % KA_WS)
    a.i("v_lshrrev_b32 v1, 6, v0")
    a.i("v_and_b32 v0, 63, v0")
    a.i("v_readfirstlane_b32 s3, v1")
    a.i("s_cmp_ge_u32 s2, %d" % (K0_LN_WGS + K0_KC_WGS))
    a.i("s_cbranch_scc1 k0_end")
    a.i("s_cmp_ge_u32 s2, %d" % K0_LN_WGS)
    a.i("s_cbranch_scc1 k0_kcomp")
    emit_ln(a)
    a.label("k0_kcomp")
    emit_kcomp(a)
    a.label("k0_end")
    a.i("s_endpgm")


def emit_ln(a):
    a.c("---- LN role: one wave = 8 tokens x 512 channels, lane = 8 channels")
    a.i("s_waitcnt lgkmcnt(0)")
    srd(a, 20, 4, 0, S * D * 2)
    srd(a, 24, 16, WS_XC, SZ_ACT)
    srd(a, 28, 16, WS_XNC, SZ_ACT)
    srd(a, 32, 16, WS_HC, SZ_ACT)
    a.i("s_lshl_b32 s36, s2, 2")
    a.i("s_add_u32 s36, s36, s3")
    a.i("s_lshl_b32 s37, s36, 13")
    a.i("s_add_u32 s38, s37, 4096")
    a.i("v_lshlrev_b32 v2, 4, v0")
    RAW = 8
    XF = 40
    for t in range(8):
        so = "s37" if t < 4 else "s38"
        a.i(f"buffer_load_dwordx4 v[{RAW+4*t}:{RAW+4*t+3}], v2, s[20:23], {so} offen offset:{(t%4)*1024}")
    a.i("v_mov_b32 v3, 0x3b000000")
    a.i("v_mov_b32 v4, 0x3727c5ac")
    a.i("v_lshlrev_b32 v5, 7, v0")
    a.i("s_waitcnt vmcnt(0)")
    for t in range(8):
        for p in range(4):
            a.i(f"v_lshlrev_b32 v{XF+8*t+2*p}, 16, v{RAW+4*t+p}")
            a.i(f"v_and_b32 v{XF+8*t+2*p+1}, 0xffff0000, v{RAW+4*t+p}")

    def store_units(base, srdreg):
        for c in range(8):
            for q in range(4):
                a.i(f"v_cvt_pk_bf16_f32 v{RAW+4*(c%2)+q}, v{base+8*(2*q)+c}, v{base+8*(2*q+1)+c}")
            a.i(f"buffer_store_dwordx4 v[{RAW+4*(c%2)}:{RAW+4*(c%2)+3}], v5, s[{srdreg}:{srdreg+3}], s37 offen offset:{c*16}")

    store_units(XF, 24)

    SUM = 16
    MEAN = 24
    RS = 32
    TMP = 104
    DEV = 106

    def layernorm(src, dst):
        for t in range(8):
            b = src + 8 * t
            a.i(f"v_add_f32 v{SUM+t}, v{b}, v{b+1}")
            for c in range(2, 8):
                a.i(f"v_add_f32 v{SUM+t}, v{SUM+t}, v{b+c}")
        dpp_sum(a, [SUM + t for t in range(8)])
        for t in range(8):
            a.i(f"v_readlane_b32 s40, v{SUM+t}, 63")
            a.i(f"v_mul_f32 v{MEAN+t}, s40, v3")
        for t in range(8):
            b = src + 8 * t
            a.i(f"v_sub_f32 v{DEV}, v{b}, v{MEAN+t}")
            a.i(f"v_mul_f32 v{SUM+t}, v{DEV}, v{DEV}")
            for c in range(1, 8):
                a.i(f"v_sub_f32 v{DEV+(c%2)}, v{b+c}, v{MEAN+t}")
                a.i(f"v_fmac_f32 v{SUM+t}, v{DEV+(c%2)}, v{DEV+(c%2)}")
        dpp_sum(a, [SUM + t for t in range(8)])
        for t in range(8):
            a.i(f"v_readlane_b32 s40, v{SUM+t}, 63")
            a.i(f"v_mul_f32 v{TMP+1}, s40, v3")
            bf16r(a, MEAN + t, MEAN + t, TMP)
            bf16r(a, TMP + 1, TMP + 1, TMP)
            a.i(f"v_add_f32 v{TMP+1}, v{TMP+1}, v4")
            bf16r(a, TMP + 1, TMP + 1, TMP)
            a.i(f"v_sqrt_f32 v{TMP+1}, v{TMP+1}")
            bf16r(a, TMP + 1, TMP + 1, TMP)
            a.i(f"v_rcp_f32 v{RS+t}, v{TMP+1}")
        for t in range(8):
            b = src + 8 * t
            o = dst + 8 * t
            for p in range(4):
                a.i(f"v_sub_f32 v{DEV}, v{b+2*p}, v{MEAN+t}")
                a.i(f"v_sub_f32 v{DEV+1}, v{b+2*p+1}, v{MEAN+t}")
                bf16r_pair(a, DEV, DEV + 1, DEV, DEV + 1, TMP)
                a.i(f"v_mul_f32 v{DEV}, v{DEV}, v{RS+t}")
                a.i(f"v_mul_f32 v{DEV+1}, v{DEV+1}, v{RS+t}")
                bf16r_pair(a, o + 2 * p, o + 2 * p + 1, DEV, DEV + 1, TMP)

    layernorm(XF, XF)
    store_units(XF, 28)
    layernorm(XF, XF)
    store_units(XF, 32)
    a.i("s_endpgm")


def emit_kcomp(a):
    a.c("---- KCOMP role: one WG = one channel d; wave w handles n in [32w, 32w+32)")
    a.i(f"s_sub_u32 s40, s2, {K0_LN_WGS}")
    a.i("s_and_b32 s41, s40, 7")
    a.i("s_lshl_b32 s41, s41, 3")
    a.i("s_lshr_b32 s42, s40, 3")
    a.i("s_and_b32 s42, s42, 7")
    a.i("s_and_b32 s43, s40, 0x1c0")
    a.i("s_add_u32 s40, s43, s41")
    a.i("s_add_u32 s40, s40, s42")
    a.i("s_waitcnt lgkmcnt(0)")
    srd(a, 20, 6, 0, D * N * 2)
    srd(a, 24, 8, 0, D * N * 2)
    srd(a, 28, 10, 0, D * N * 2)
    srd(a, 32, 12, 0, D * N * 2)
    srd(a, 36, 14, 0, D * 2)
    srd(a, 44, 16, WS_KF, S * D * 2)
    srd(a, 48, 16, WS_KS, D * 4)
    a.i("s_lshl_b32 s41, s40, 8")
    a.i("s_lshl_b32 s42, s40, 1")
    a.i("v_lshrrev_b32 v2, 4, v0")
    a.i("v_lshlrev_b32 v3, 4, v2")
    a.i("s_lshl_b32 s43, s3, 6")
    a.i("v_add_u32 v3, s43, v3")
    a.i("v_lshlrev_b32 v4, 2, v0")
    a.i("v_mov_b32 v5, 0")
    a.i("buffer_load_dwordx4 v[8:11], v3, s[20:23], s41 offen")
    a.i("buffer_load_dwordx4 v[12:15], v3, s[24:27], s41 offen")
    a.i("buffer_load_dwordx4 v[16:19], v3, s[28:31], s41 offen")
    a.i("buffer_load_dwordx4 v[20:23], v3, s[32:35], s41 offen")
    a.i("buffer_load_dword v24, v4, s[28:31], s41 offen")
    a.i("buffer_load_dword v25, v4, s[32:35], s41 offen")
    a.i("buffer_load_ushort v26, v5, s[36:39], s42 offen")
    a.i("v_and_b32 v6, 15, v0")
    a.i("v_cvt_f32_u32 v7, v6")
    a.i("v_lshlrev_b32 v27, 4, v6")
    a.i("v_add_u32 v27, 1, v27")
    a.i("v_cvt_f32_u32 v27, v27")
    a.i(f"s_mov_b32 s52, 0x{LOG2E:x}")
    a.i(f"s_mov_b32 s53, 0x{INV2PI:x}")
    a.i("s_waitcnt vmcnt(0)")
    a.i("v_lshlrev_b32 v26, 16, v26")
    a.i("v_mul_f32 v26, s52, v26")
    a.i("v_exp_f32 v26, v26")
    bf16r(a, 26, 26, 28)
    a.i("v_lshlrev_b32 v28, 16, v24")
    a.i("v_and_b32 v29, 0xffff0000, v24")
    a.i("v_lshlrev_b32 v30, 16, v25")
    a.i("v_and_b32 v31, 0xffff0000, v25")
    a.i("v_add_f32 v32, v28, v29")
    a.i("v_max_f32 v33, abs(v28), abs(v29)")
    a.i("v_max_f32 v34, abs(v30), abs(v31)")
    a.i("v_max_f32 v33, v33, v34")
    dpp_sum(a, [32])
    dpp_sum(a, [33], op="v_max_f32")
    a.i("v_readlane_b32 s54, v32, 63")
    a.i("v_readlane_b32 s55, v33, 63")
    a.i("v_mul_f32 v33, s55, v26")
    a.i("v_mul_f32 v32, s54, v26")
    a.i("v_add_f32 v32, v32, v32")
    a.i("v_lshrrev_b32 v34, 23, v33")
    a.i("v_and_b32 v34, 0xff, v34")
    a.i("v_max_u32 v34, 14, v34")
    a.i("v_min_u32 v34, 0xfd, v34")
    a.i("v_sub_u32 v35, 0x10b, v34")
    a.i("v_lshlrev_b32 v35, 23, v35")
    a.i("v_add_u32 v36, -13, v34")
    a.i("v_lshlrev_b32 v36, 23, v36")
    a.i("v_mul_f32 v37, v26, v35")
    A2, WR, CRS, CIS = 40, 48, 56, 64
    for q in range(8):
        rg = 8 + q // 2
        ex = "v_lshlrev_b32 v{d}, 16, v{s}" if q % 2 == 0 else "v_and_b32 v{d}, 0xffff0000, v{s}"
        a.i(ex.format(d=A2 + q, s=rg))
        a.i(ex.format(d=WR + q, s=rg + 4))
        a.i(ex.format(d=CRS + q, s=rg + 8))
        a.i(ex.format(d=CIS + q, s=rg + 12))
    for q in range(8):
        a.i(f"v_mul_f32 v{A2+q}, s52, v{A2+q}")
        a.i(f"v_exp_f32 v{A2+q}, v{A2+q}")
    for q in range(8):
        bf16r(a, A2 + q, A2 + q, 38)
        a.i(f"v_mul_f32 v{A2+q}, v{A2+q}, v26")
        a.i(f"v_mul_f32 v{A2+q}, s52, v{A2+q}")
        a.i(f"v_sub_f32 v{A2+q}, 0, v{A2+q}")
        a.i(f"v_mul_f32 v{WR+q}, v{WR+q}, v26")
        a.i(f"v_mul_f32 v{WR+q}, s53, v{WR+q}")
        a.i(f"v_mul_f32 v{CRS+q}, v{CRS+q}, v37")
        a.i(f"v_mul_f32 v{CIS+q}, v{CIS+q}, v37")
    FR = 72
    def frag(r, kind):
        return FR + 16 * r + 4 * kind
    T = 136
    for qp in range(4):
        st = {}
        for h in range(2):
            q = 2 * qp + h
            Fr, Fi, Pr, Pi = T + 8 * h, T + 8 * h + 1, T + 8 * h + 2, T + 8 * h + 3
            st[h] = (Fr, Fi, Pr, Pi)
            t0, t1, t2 = T + 16, T + 17, T + 18
            for (pos, xr, xi) in ((7, Fr, Fi), (27, Pr, Pi)):
                a.i(f"v_mul_f32 v{t0}, v{A2+q}, v{pos}")
                a.i(f"v_mul_f32 v{t1}, v{WR+q}, v{pos}")
                a.i(f"v_exp_f32 v{t0}, v{t0}")
                a.i(f"v_fract_f32 v{t1}, v{t1}")
                a.i(f"v_cos_f32 v{t2}, v{t1}")
                a.i(f"v_sin_f32 v{t1}, v{t1}")
                a.i(f"v_mul_f32 v{xr}, v{t0}, v{t2}")
                a.i(f"v_mul_f32 v{xi}, v{t0}, v{t1}")
        for r in range(4):
            for h in range(2):
                q = 2 * qp + h
                Fr, Fi, Pr, Pi = st[h]
                a.i(f"v_mul_f32 v{T+20+h}, v{CRS+q}, v{Pr}")
                a.i(f"v_fma_f32 v{T+20+h}, -v{CIS+q}, v{Pi}, v{T+20+h}")
                a.i(f"v_mul_f32 v{T+22+h}, v{CRS+q}, v{Pi}")
                a.i(f"v_fma_f32 v{T+22+h}, v{CIS+q}, v{Pr}, v{T+22+h}")
            a.i(f"v_cvt_pk_f16_f32 v{frag(r,0)+qp}, v{T+20}, v{T+21}")
            a.i(f"v_cvt_pk_f16_f32 v{frag(r,1)+qp}, -v{T+22}, -v{T+23}")
            a.i(f"v_cvt_pk_f16_f32 v{frag(r,2)+qp}, v{st[0][0]}, v{st[1][0]}")
            a.i(f"v_cvt_pk_f16_f32 v{frag(r,3)+qp}, v{st[0][1]}, v{st[1][1]}")
            if r < 3:
                for h in range(2):
                    for (xr, xi) in ((st[h][0], st[h][1]), (st[h][2], st[h][3])):
                        a.i(f"v_mul_f32 v{T+16}, v{xr}, v{xi}")
                        a.i(f"v_mul_f32 v{T+17}, v{xi}, v{xi}")
                        a.i(f"v_fma_f32 v{xr}, v{xr}, v{xr}, -v{T+17}")
                        a.i(f"v_add_f32 v{xi}, v{T+16}, v{T+16}")
    for r in range(4):
        for j in range(4):
            a.i(f"v_mov_b32 v{8+4*r+j}, 0")
    for r in range(4):
        a.i(f"v_mfma_f32_16x16x32_f16 v[{8+4*r}:{11+4*r}], v[{frag(r,0)}:{frag(r,0)+3}], v[{frag(r,2)}:{frag(r,2)+3}], v[{8+4*r}:{11+4*r}]")
        a.i(f"v_mfma_f32_16x16x32_f16 v[{8+4*r}:{11+4*r}], v[{frag(r,1)}:{frag(r,1)+3}], v[{frag(r,3)}:{frag(r,3)+3}], v[{8+4*r}:{11+4*r}]")
    a.i("v_lshlrev_b32 v40, 8, v2")
    a.i("v_lshlrev_b32 v41, 2, v6")
    a.i("v_add_u32 v40, v40, v41")
    a.i("s_lshl_b32 s43, s3, 12")
    a.i("v_add_u32 v40, s43, v40")
    for r in range(4):
        for j in range(4):
            a.i(f"ds_write_b32 v40, v{8+4*r+j} offset:{r*1024+j*64}")
    a.i("s_waitcnt lgkmcnt(0)")
    a.i("s_barrier")
    a.i("s_lshl_b32 s43, s3, 8")
    a.i("v_lshlrev_b32 v41, 2, v0")
    a.i("v_add_u32 v41, s43, v41")
    KSLOT = 16384
    a.i("v_add_f32 v42, v36, v36")
    for r in range(4):
        for w in range(4):
            a.i(f"ds_read_b32 v{44+4*r+w}, v41 offset:{w*4096+r*1024}")
    a.i("s_waitcnt lgkmcnt(0)")
    for r in range(4):
        a.i(f"v_add_f32 v{60+r}, v{44+4*r}, v{45+4*r}")
        a.i(f"v_add_f32 v{64+r}, v{46+4*r}, v{47+4*r}")
        a.i(f"v_add_f32 v{60+r}, v{60+r}, v{64+r}")
        a.i(f"v_mul_f32 v{60+r}, v{60+r}, v42")
    a.i(f"ds_write_b32 v41, v60 offset:{KSLOT+4}")
    a.i("v_mov_b32 v68, v60")
    a.i("v_max_f32 v68, abs(v68), abs(v32)")
    a.i("s_cmp_lt_u32 s3, 2")
    a.i("s_cbranch_scc1 kc_lowhalf")
    for r in range(1, 4):
        a.i(f"ds_write_b32 v41, v{60+r} offset:{KSLOT+4+512*r}")
        a.i(f"v_max_f32 v68, v68, abs(v{60+r})")
    a.i("s_branch kc_join")
    a.label("kc_lowhalf")
    a.i("v_mov_b32 v69, %d" % KSLOT)
    a.i("ds_write_b32 v69, v32")
    a.label("kc_join")
    dpp_sum(a, [68], op="v_max_f32")
    a.i("v_readlane_b32 s54, v68, 63")
    a.i("v_mov_b32 v69, s54")
    a.i("s_lshl_b32 s43, s3, 2")
    a.i("v_mov_b32 v70, s43")
    a.i(f"ds_write_b32 v70, v69 offset:{KSLOT+3072}")
    a.i("s_waitcnt lgkmcnt(0)")
    a.i("s_barrier")
    a.i("v_mov_b32 v70, 0")
    a.i(f"ds_read_b128 v[72:75], v70 offset:{KSLOT+3072}")
    a.i("s_waitcnt lgkmcnt(0)")
    a.i("v_max_f32 v72, v72, v73")
    a.i("v_max_f32 v74, v74, v75")
    a.i("v_max_f32 v72, v72, v74")
    a.i("v_lshrrev_b32 v73, 23, v72")
    a.i("v_and_b32 v73, 0xff, v73")
    a.i("v_max_u32 v73, 14, v73")
    a.i("v_min_u32 v73, 0xfd, v73")
    a.i("v_sub_u32 v74, 0x10b, v73")
    a.i("v_lshlrev_b32 v74, 23, v74")
    a.i("v_add_u32 v75, -13, v73")
    a.i("v_lshlrev_b32 v75, 23, v75")
    a.i("s_cmp_lg_u32 s3, 0")
    a.i("s_cbranch_scc1 kc_noscale")
    a.i("v_mov_b32 v70, 0")
    a.i("s_lshl_b32 s43, s40, 2")
    a.i("buffer_store_dword v75, v70, s[48:51], s43 offen")
    a.label("kc_noscale")
    a.i("s_lshl_b32 s43, s3, 6")
    a.i("v_add_u32 v76, s43, v0")
    a.i("v_lshrrev_b32 v77, 2, v76")
    a.i("v_lshlrev_b32 v77, 5, v77")
    a.i("v_and_b32 v78, 3, v76")
    a.i("v_lshlrev_b32 v78, 3, v78")
    a.i("v_sub_u32 v77, v77, v78")
    a.i("v_add_u32 v77, 31, v77")
    for q in range(8):
        jr, ur, sr_ = 80 + q, 88 + q, 96 + q
        a.i(f"v_add_u32 v{jr}, {-q}, v77")
        a.i(f"v_cvt_f32_u32 v{ur}, v{jr}")
        a.i(f"v_lshrrev_b32 v{sr_}, 16, v{ur}")
        a.i(f"v_and_b32 v{sr_}, 1, v{sr_}")
        a.i(f"v_add3_u32 v{ur}, v{ur}, v{sr_}, 0x7fff" if False else f"v_add_u32 v{ur}, v{ur}, v{sr_}")
        a.i(f"v_add_u32 v{ur}, 0x7fff, v{ur}")
        a.i(f"v_lshrrev_b32 v{ur}, 16, v{ur}")
        a.i(f"v_add_u32 v{ur}, {-(133*128)}, v{ur}")
        a.i(f"v_cmp_gt_u32 vcc, 128, v{jr}")
        a.i(f"v_cndmask_b32 v{ur}, v{ur}, v{jr}, vcc")
        a.i(f"v_lshlrev_b32 v{ur}, 2, v{ur}")
        a.i(f"ds_read_b32 v{sr_}, v{ur} offset:{KSLOT}")
    a.i("s_waitcnt lgkmcnt(0)")
    for q in range(8):
        a.i(f"v_mul_f32 v{96+q}, v{96+q}, v74")
    for qp in range(4):
        a.i(f"v_cvt_pk_f16_f32 v{104+qp}, v{96+2*qp}, v{97+2*qp}")
    a.i("v_lshlrev_b32 v78, 4, v76")
    a.i("s_lshl_b32 s43, s40, 12")
    a.i("buffer_store_dwordx4 v[104:107], v78, s[44:47], s43 offen")
    a.i("s_endpgm")


GELU_C = 0xc01357a2
GELU_K = 0xbdd2d3e0


def emit_gemm(a, tag, nsteps, nslots, wrs, epi, sW, sAct, s_mt, s_dt):
    dist = nslots - 1
    a.c(f"---- GEMM role {tag}: nsteps={nsteps} nslots={nslots}")
    a.i("s_and_b32 s60, s3, 1")
    a.i("s_lshr_b32 s61, s3, 1")
    a.i("v_lshrrev_b32 v2, 3, v0")
    a.i(f"v_mul_u32_u24 v2, {wrs}, v2" if wrs <= 64 else f"s_mov_b32 s62, {wrs}")
    if wrs > 64:
        a.i("v_mul_u32_u24 v2, s62, v2")
    a.i("v_lshrrev_b32 v3, 4, v0")
    a.i("v_and_b32 v3, 1, v3")
    a.i("v_lshlrev_b32 v3, 2, v3")
    a.i("v_and_b32 v4, 7, v0")
    a.i("v_xor_b32 v3, v3, v4")
    a.i("v_lshlrev_b32 v3, 4, v3")
    a.i("v_add_u32 v2, v2, v3")
    a.i("v_lshlrev_b32 v3, 4, v0")
    a.i(f"s_mul_i32 s62, s3, {16 * wrs}")
    a.i(f"s_lshl_b32 s63, s{s_mt}, 7")
    a.i("s_add_u32 s62, s62, s63")
    a.i(f"s_add_u32 s63, s62, {8 * wrs}")
    a.i("s_lshl_b32 s64, s3, 14")
    a.i(f"s_lshl_b32 s65, s{s_dt}, 10")
    a.i("s_add_u32 s64, s64, s65")
    a.i("s_add_u32 s65, s64, 8192")
    a.i("s_lshl_b32 s66, s3, 11")
    a.i("v_and_b32 v4, 15, v0")
    a.i("v_lshrrev_b32 v5, 2, v4")
    a.i("v_and_b32 v6, 3, v0")
    a.i("v_lshrrev_b32 v7, 5, v0")
    a.i("v_lshrrev_b32 v8, 4, v0")
    a.i("v_and_b32 v8, 1, v8")
    a.i("v_lshlrev_b32 v9, 3, v7")
    a.i("v_add_u32 v9, v9, v5")
    a.i("v_lshlrev_b32 v9, 3, v9")
    a.i("v_lshlrev_b32 v10, 1, v8")
    a.i("v_lshrrev_b32 v11, 1, v6")
    a.i("v_add_u32 v10, v10, v11")
    a.i("s_lshl_b32 s67, s60, 2")
    a.i("v_add_u32 v10, s67, v10")
    a.i("v_lshrrev_b32 v11, 1, v5")
    a.i("v_and_b32 v11, 1, v11")
    a.i("v_lshlrev_b32 v11, 2, v11")
    a.i("v_xor_b32 v10, v10, v11")
    a.i("v_add_u32 v9, v9, v10")
    a.i("v_lshlrev_b32 v9, 4, v9")
    a.i("v_and_b32 v10, 1, v6")
    a.i("v_lshlrev_b32 v10, 3, v10")
    a.i("v_add_u32 v4, v9, v10")
    a.i("v_lshlrev_b32 v5, 6, v7")
    a.i("v_and_b32 v6, 31, v0")
    a.i("v_add_u32 v5, v5, v6")
    a.i("s_lshl_b32 s67, s61, 5")
    a.i("v_add_u32 v5, s67, v5")
    a.i("v_lshlrev_b32 v5, 4, v5")
    a.i("v_add_u32 v5, 0x2000, v5")
    ACC, AF, BF = 16, 32, 48
    epi("pre")
    for j in range(16):
        a.i(f"v_mov_b32 v{ACC+j}, 0")

    def issue(stage):
        slot = stage % nslots
        base = slot * 16384
        a.i(f"s_add_u32 m0, s66, {base}")
        a.i(f"buffer_load_dwordx4 v2, s[{sW}:{sW+3}], s62 offen lds")
        a.i(f"s_add_u32 m0, s66, {base + 1024}")
        a.i(f"buffer_load_dwordx4 v2, s[{sW}:{sW+3}], s63 offen lds")
        a.i(f"s_add_u32 m0, s66, {base + 8192}")
        a.i(f"buffer_load_dwordx4 v3, s[{sAct}:{sAct+3}], s64 offen lds")
        a.i(f"s_add_u32 m0, s66, {base + 8192 + 1024}")
        a.i(f"buffer_load_dwordx4 v3, s[{sAct}:{sAct+3}], s65 offen lds")
        a.i(f"s_add_u32 s62, s62, {64 * wrs}")
        a.i(f"s_add_u32 s63, s63, {64 * wrs}")
        a.i("s_add_u32 s64, s64, 0x10000")
        a.i("s_add_u32 s65, s65, 0x10000")

    for st in range(min(dist, nsteps)):
        issue(st)
    for i in range(nsteps):
        after = min(i + dist - 1, nsteps - 1) - i
        a.i(f"s_waitcnt vmcnt({4 * after})")
        a.i("s_barrier")
        if i + dist < nsteps:
            issue(i + dist)
        base = (i % nslots) * 16384
        for kk in range(4):
            a.i(f"ds_read_b64_tr_b16 v[{AF+4*kk}:{AF+4*kk+1}], v4 offset:{base + 2048*kk}")
            a.i(f"ds_read_b64_tr_b16 v[{AF+4*kk+2}:{AF+4*kk+3}], v4 offset:{base + 2048*kk + 512}")
            a.i(f"ds_read_b128 v[{BF+4*kk}:{BF+4*kk+3}], v5 offset:{base + 2048*kk}")
        for kk in range(4):
            a.i(f"s_waitcnt lgkmcnt({9 - 3*kk})")
            a.i(f"v_mfma_f32_32x32x16_bf16 v[{ACC}:{ACC+15}], v[{AF+4*kk}:{AF+4*kk+3}], v[{BF+4*kk}:{BF+4*kk+3}], v[{ACC}:{ACC+15}]")
    epi("post")


def gemm1_epi(a, sB1, sG, s_mt, s_dt):
    ACC = 16
    def epi(phase):
        if phase == "pre":
            a.i("v_lshrrev_b32 v6, 5, v0")
            a.i("v_lshlrev_b32 v6, 3, v6")
            a.i("s_lshl_b32 s67, s60, 6")
            a.i("v_add_u32 v6, s67, v6")
            a.i(f"s_lshl_b32 s67, s{s_mt}, 7")
            for i in range(4):
                a.i(f"buffer_load_dwordx2 v[{64+2*i}:{65+2*i}], v6, s[{sB1}:{sB1+3}], s67 offen offset:{16*i}")
            return
        a.i("s_mov_b32 s68, 0x%x" % GELU_C)
        a.i("s_mov_b32 s69, 0x%x" % GELU_K)
        a.i("v_and_b32 v6, 31, v0")
        a.i("s_lshl_b32 s67, s61, 5")
        a.i("v_add_u32 v6, s67, v6")
        a.i("v_lshlrev_b32 v6, 4, v6")
        a.i("v_lshrrev_b32 v7, 5, v0")
        a.i("v_lshlrev_b32 v7, 3, v7")
        a.i("v_add_u32 v6, v6, v7")
        a.i("s_lshl_b32 s67, s60, 15")
        a.i("v_add_u32 v6, s67, v6")
        a.i(f"s_lshl_b32 s67, s{s_mt}, 16")
        a.i(f"s_lshl_b32 s70, s{s_dt}, 10")
        a.i("s_add_u32 s67, s67, s70")
        for i in range(4):
            for hp in range(2):
                r0, r1 = ACC + 4*i + 2*hp, ACC + 4*i + 2*hp + 1
                bb = 64 + 2*i + hp
                a.i(f"v_cvt_pk_bf16_f32 v8, v{r0}, v{r1}")
                a.i("v_lshlrev_b32 v9, 16, v8")
                a.i("v_and_b32 v10, 0xffff0000, v8")
                a.i(f"v_lshlrev_b32 v11, 16, v{bb}")
                a.i(f"v_and_b32 v12, 0xffff0000, v{bb}")
                a.i("v_add_f32 v9, v9, v11")
                a.i("v_add_f32 v10, v10, v12")
                a.i("v_cvt_pk_bf16_f32 v8, v9, v10")
                a.i("v_lshlrev_b32 v9, 16, v8")
                a.i("v_and_b32 v10, 0xffff0000, v8")
                for x in (9, 10):
                    a.i(f"v_mul_f32 v11, v{x}, v{x}")
                    a.i("v_mov_b32 v13, s68")
                    a.i("v_fmac_f32 v13, s69, v11")
                    a.i(f"v_mul_f32 v13, v13, v{x}")
                    a.i("v_exp_f32 v13, v13")
                    a.i("v_add_f32 v13, 1.0, v13")
                    a.i("v_rcp_f32 v13, v13")
                    a.i(f"v_mul_f32 v{x}, v{x}, v13")
                a.i(f"v_cvt_pk_bf16_f32 v{72+hp}, v9, v10")
            a.i(f"buffer_store_dwordx2 v[72:73], v6, s[{sG}:{sG+3}], s67 offen offset:{0}" if i == 0 else
                f"buffer_store_dwordx2 v[72:73], v6, s[{sG}:{sG+3}], s71 offen")
            a.i(f"s_add_u32 s71, s67, {8192*(i+1)}")
        a.i("s_endpgm")
    return epi


def gemm2_epi(a, sB2, sT, sOut, s_mt, s_dt):
    ACC = 16
    def epi(phase):
        if phase == "pre":
            a.i("v_lshrrev_b32 v6, 5, v0")
            a.i("v_lshlrev_b32 v6, 3, v6")
            a.i("s_lshl_b32 s67, s60, 6")
            a.i("v_add_u32 v6, s67, v6")
            a.i(f"s_lshl_b32 s67, s{s_mt}, 7")
            for i in range(4):
                a.i(f"buffer_load_dwordx2 v[{64+2*i}:{65+2*i}], v6, s[{sB2}:{sB2+3}], s67 offen offset:{16*i}")
            a.i("v_and_b32 v7, 31, v0")
            a.i("s_lshl_b32 s70, s61, 5")
            a.i("v_add_u32 v7, s70, v7")
            a.i(f"s_lshl_b32 s70, s{s_dt}, 6")
            a.i("v_add_u32 v7, s70, v7")
            a.i("v_lshlrev_b32 v8, 12, v7")
            a.i("v_add_u32 v8, v8, v6")
            for i in range(4):
                a.i(f"buffer_load_dwordx2 v[{72+2*i}:{73+2*i}], v8, s[{sT}:{sT+3}], s67 offen offset:{16*i}")
            return
        a.i("v_lshrrev_b32 v6, 5, v0")
        a.i("v_lshlrev_b32 v6, 12, v6")
        a.i("v_lshlrev_b32 v8, 1, v7")
        a.i("v_add_u32 v6, v6, v8")
        a.i(f"s_lshl_b32 s67, s{s_mt}, 16")
        a.i("s_lshl_b32 s70, s60, 15")
        a.i("s_add_u32 s67, s67, s70")
        for i in range(4):
            for hp in range(2):
                r0, r1 = ACC + 4*i + 2*hp, ACC + 4*i + 2*hp + 1
                bb = 64 + 2*i + hp
                tt = 72 + 2*i + hp
                a.i(f"v_cvt_pk_bf16_f32 v8, v{r0}, v{r1}")
                a.i("v_lshlrev_b32 v9, 16, v8")
                a.i("v_and_b32 v10, 0xffff0000, v8")
                a.i(f"v_lshlrev_b32 v11, 16, v{bb}")
                a.i(f"v_and_b32 v12, 0xffff0000, v{bb}")
                a.i("v_add_f32 v9, v9, v11")
                a.i("v_add_f32 v10, v10, v12")
                a.i("v_cvt_pk_bf16_f32 v8, v9, v10")
                a.i("v_lshlrev_b32 v9, 16, v8")
                a.i("v_and_b32 v10, 0xffff0000, v8")
                a.i(f"v_lshlrev_b32 v11, 16, v{tt}")
                a.i(f"v_and_b32 v12, 0xffff0000, v{tt}")
                a.i("v_add_f32 v9, v11, v9")
                a.i("v_add_f32 v10, v12, v10")
                a.i(f"v_cvt_pk_bf16_f32 v{80+hp}, v9, v10")
            for hp in range(2):
                a.i(f"s_add_u32 s71, s67, {(8*i + 2*hp)*1024}")
                a.i(f"buffer_store_short v{80+hp}, v6, s[{sOut}:{sOut+3}], s71 offen")
                a.i(f"buffer_store_short_d16_hi v{80+hp}, v6, s[{sOut}:{sOut+3}], s71 offen offset:1024")
        a.i("s_endpgm")
    return epi


K1_G_WGS = 224
K1_C_WGS = 512
K1_LDS = 49152
CV_PART, CV_U, CV_KNEG = 0, 36864, 41024
CV_K0 = CV_KNEG + 31 * 80


def emit_k1(a):
    a.raw(".globl k1_kernel")
    a.raw(".p2align 8")
    a.raw(".type k1_kernel,@function")
    a.label("k1_kernel")
    a.i("s_load_dwordx2 s[4:5], s[0:1], %d" % KA_W1)
    a.i("s_load_dwordx2 s[6:7], s[0:1], %d" % KA_B1)
    a.i("s_load_dwordx2 s[8:9], s[0:1], %d" % KA_WS)
    a.i("s_load_dwordx2 s[10:11], s[0:1], %d" % KA_DSK)
    a.i("v_lshrrev_b32 v1, 6, v0")
    a.i("v_mov_b32 v127, v0")
    a.i("v_and_b32 v0, 63, v0")
    a.i("v_readfirstlane_b32 s3, v1")
    a.i("s_cmp_ge_u32 s2, %d" % (K1_G_WGS + K1_C_WGS))
    a.i("s_cbranch_scc1 k1_end")
    a.i("s_cmp_ge_u32 s2, %d" % K1_G_WGS)
    a.i("s_cbranch_scc1 k1_conv")
    a.i("s_and_b32 s12, s2, 7")
    a.i("s_lshr_b32 s13, s2, 3")
    a.i("s_lshr_b32 s14, s13, 3")
    a.i("s_lshl_b32 s14, s14, 3")
    a.i("s_add_u32 s14, s14, s12")
    a.i("s_and_b32 s15, s13, 7")
    a.i("s_cmp_lt_u32 s13, 24")
    a.i("s_cbranch_scc1 k1_g_map")
    a.i("s_and_b32 s14, s12, 3")
    a.i("s_add_u32 s14, s14, 24")
    a.i("s_and_b32 s15, s12, 4")
    a.i("s_add_u32 s15, s15, s13")
    a.i("s_sub_u32 s15, s15, 24")
    a.label("k1_g_map")
    a.i("s_waitcnt lgkmcnt(0)")
    srd(a, 20, 4, 0, S * F * 2)
    srd(a, 24, 8, WS_HC, SZ_ACT)
    srd(a, 28, 6, 0, F * 2)
    srd(a, 32, 8, WS_G, SZ_G)
    emit_gemm(a, "G1", S // 64, 3, F * 2, gemm1_epi(a, 28, 32, 14, 15), 20, 24, 14, 15)
    a.label("k1_conv")
    emit_conv(a)
    a.label("k1_end")
    a.i("s_endpgm")


def emit_conv(a):
    a.c("---- CONV role: one WG = one channel")
    a.i(f"s_sub_u32 s40, s2, {K1_G_WGS}")
    a.i("s_and_b32 s41, s40, 7")
    a.i("s_lshl_b32 s41, s41, 3")
    a.i("s_lshr_b32 s42, s40, 3")
    a.i("s_and_b32 s42, s42, 7")
    a.i("s_and_b32 s43, s40, 0x1c0")
    a.i("s_add_u32 s40, s43, s41")
    a.i("s_add_u32 s40, s40, s42")
    a.i("s_waitcnt lgkmcnt(0)")
    srd(a, 20, 8, WS_XC, SZ_ACT)
    srd(a, 24, 8, WS_XNC, SZ_ACT)
    srd(a, 28, 8, WS_KF, S * D * 2)
    srd(a, 32, 8, WS_KS, D * 4)
    srd(a, 36, 10, 0, D * 2)
    srd(a, 44, 8, WS_T, S * D * 2)
    a.i("s_lshl_b32 s41, s40, 4")
    a.i("s_lshl_b32 s42, s40, 12")
    a.i("s_lshl_b32 s43, s40, 2")
    a.i("s_lshl_b32 s48, s40, 1")
    a.i("v_lshlrev_b32 v2, 13, v127")
    a.i("v_lshlrev_b32 v3, 4, v127")
    a.i("v_mov_b32 v4, 0")
    a.i("buffer_load_dwordx4 v[8:11], v2, s[24:27], s41 offen")
    a.i("buffer_load_dwordx4 v[12:15], v2, s[20:23], s41 offen")
    a.i("buffer_load_dwordx4 v[16:19], v3, s[28:31], s42 offen")
    a.i("buffer_load_dword v20, v4, s[32:35], s43 offen")
    a.i("buffer_load_ushort v21, v4, s[36:39], s48 offen")
    a.i("v_mov_b32 v24, 0")
    a.i("v_mov_b32 v25, 0")
    a.i("v_mov_b32 v26, 0")
    a.i("v_mov_b32 v27, 0")
    a.i("v_cmp_gt_u32 vcc, 155, v127")
    a.i("s_and_saveexec_b64 s[50:51], vcc")
    a.i(f"ds_write_b128 v3, v[24:27] offset:{CV_KNEG}")
    a.i("s_mov_b64 exec, s[50:51]")
    a.i("v_cmp_gt_u32 vcc, 4, v127")
    a.i("s_and_saveexec_b64 s[50:51], vcc")
    a.i(f"ds_write_b128 v3, v[24:27] offset:{CV_U}")
    a.i("s_mov_b64 exec, s[50:51]")
    a.i("v_lshrrev_b32 v5, 2, v127")
    a.i("v_mul_u32_u24 v5, 80, v5")
    a.i("v_and_b32 v6, 3, v127")
    a.i("v_lshlrev_b32 v6, 4, v6")
    a.i("v_add_u32 v5, v5, v6")
    a.i("s_waitcnt vmcnt(0)")
    a.i(f"ds_write_b128 v5, v[16:19] offset:{CV_K0}")
    for p in range(4):
        a.i(f"v_lshlrev_b32 v28, 16, v{8+p}")
        a.i(f"v_and_b32 v29, 0xffff0000, v{8+p}")
        a.i(f"v_cvt_pk_f16_f32 v{24+p}, v28, v29")
    a.i(f"ds_write_b128 v3, v[24:27] offset:{CV_U + 64}")
    a.i("s_waitcnt lgkmcnt(0)")
    a.i("s_barrier")
    a.i("v_and_b32 v5, 31, v0")
    a.i("v_lshrrev_b32 v6, 5, v0")
    a.i("v_lshlrev_b32 v7, 1, v5")
    a.i("v_lshlrev_b32 v22, 4, v6")
    a.i("v_add_u32 v7, v7, v22")
    a.i("s_lshl_b32 s49, s3, 6")
    a.i(f"s_add_u32 s49, s49, {CV_U + 2}")
    a.i("v_add_u32 v7, s49, v7")
    a.i("v_mul_u32_u24 v23, 80, v5")
    a.i("v_add_u32 v23, v23, v22")
    a.i("s_mul_i32 s49, s3, 80")
    a.i(f"s_sub_u32 s49, {CV_K0 - 4800}, s49")
    a.i("v_add_u32 v23, s49, v23")
    ACC = 32
    for j in range(32):
        a.i(f"v_mov_b32 v{ACC+j}, 0")
    SET = [64, 88]

    def reads(it):
        s0 = SET[it % 2]
        n = 0
        for kk in range(2):
            a.i(f"ds_read_b128 v[{s0+4*kk}:{s0+4*kk+3}], v7 offset:{256*it + 32*kk}")
            n += 1
            if it < 8:
                a.i(f"ds_read_b128 v[{s0+8+4*kk}:{s0+8+4*kk+3}], v23 offset:{320*(15-it) + 32*kk}")
                n += 1
            a.i(f"ds_read_b128 v[{s0+16+4*kk}:{s0+16+4*kk+3}], v23 offset:{320*(15-it) + 32*kk + 2560}")
            n += 1
        return n

    reads(0)
    for it in range(16):
        nn = reads(it + 1) if it + 1 < 16 else 0
        a.i(f"s_waitcnt lgkmcnt({nn})")
        s0 = SET[it % 2]
        for kk in range(2):
            if it < 8:
                a.i(f"v_mfma_f32_32x32x16_f16 v[{ACC}:{ACC+15}], v[{s0+4*kk}:{s0+4*kk+3}], v[{s0+8+4*kk}:{s0+8+4*kk+3}], v[{ACC}:{ACC+15}]")
            a.i(f"v_mfma_f32_32x32x16_f16 v[{ACC+16}:{ACC+31}], v[{s0+4*kk}:{s0+4*kk+3}], v[{s0+16+4*kk}:{s0+16+4*kk+3}], v[{ACC+16}:{ACC+31}]")
    a.i("v_mul_u32_u24 v5, 144, v5")
    a.i("v_add_u32 v5, v5, v22")
    a.i("s_mul_i32 s49, s3, 9216")
    a.i("v_add_u32 v5, s49, v5")
    for T in range(2):
        for i in range(4):
            a.i(f"ds_write_b128 v5, v[{ACC+16*T+4*i}:{ACC+16*T+4*i+3}] offset:{4608*T + 32*i}")
    a.i("s_waitcnt lgkmcnt(0)")
    a.i("s_barrier")
    a.i("v_lshrrev_b32 v5, 2, v127")
    a.i("v_mul_u32_u24 v5, 144, v5")
    a.i("v_and_b32 v6, 3, v127")
    a.i("v_lshlrev_b32 v6, 5, v6")
    a.i("v_add_u32 v5, v5, v6")
    for w in range(4):
        a.i(f"ds_read_b128 v[{64+8*w}:{67+8*w}], v5 offset:{9216*w}")
        a.i(f"ds_read_b128 v[{68+8*w}:{71+8*w}], v5 offset:{9216*w + 16}")
    a.i("v_lshlrev_b32 v21, 16, v21")
    a.i("s_waitcnt lgkmcnt(0)")
    for e in range(8):
        a.i(f"v_add_f32 v{64+e}, v{64+e}, v{72+e}")
        a.i(f"v_add_f32 v{80+e}, v{80+e}, v{88+e}")
        a.i(f"v_add_f32 v{64+e}, v{64+e}, v{80+e}")
        a.i(f"v_mul_f32 v{64+e}, v{64+e}, v20")
    for p in range(4):
        e0, e1 = 64 + 2*p, 65 + 2*p
        a.i(f"v_cvt_pk_bf16_f32 v72, v{e0}, v{e1}")
        a.i("v_lshlrev_b32 v73, 16, v72")
        a.i("v_and_b32 v74, 0xffff0000, v72")
        a.i(f"v_lshlrev_b32 v75, 16, v{8+p}")
        a.i(f"v_and_b32 v76, 0xffff0000, v{8+p}")
        a.i("v_mul_f32 v75, v75, v21")
        a.i("v_mul_f32 v76, v76, v21")
        a.i("v_cvt_pk_bf16_f32 v72, v75, v76")
        a.i("v_lshlrev_b32 v75, 16, v72")
        a.i("v_and_b32 v76, 0xffff0000, v72")
        a.i("v_add_f32 v73, v73, v75")
        a.i("v_add_f32 v74, v74, v76")
        a.i("v_cvt_pk_bf16_f32 v72, v73, v74")
        a.i("v_lshlrev_b32 v73, 16, v72")
        a.i("v_and_b32 v74, 0xffff0000, v72")
        a.i(f"v_lshlrev_b32 v75, 16, v{12+p}")
        a.i(f"v_and_b32 v76, 0xffff0000, v{12+p}")
        a.i("v_add_f32 v73, v75, v73")
        a.i("v_add_f32 v74, v76, v74")
        a.i(f"v_cvt_pk_bf16_f32 v{80+p}, v73, v74")
    a.i("buffer_store_dwordx4 v[80:83], v3, s[44:47], s42 offen")
    a.i("s_endpgm")


K2_WGS = 256
K2_SLOTS = 4
K2_LDS = K2_SLOTS * 16384


def emit_k2(a):
    a.raw(".globl k2_kernel")
    a.raw(".p2align 8")
    a.raw(".type k2_kernel,@function")
    a.label("k2_kernel")
    a.i("s_load_dwordx2 s[4:5], s[0:1], %d" % KA_W2)
    a.i("s_load_dwordx2 s[6:7], s[0:1], %d" % KA_B2)
    a.i("s_load_dwordx2 s[8:9], s[0:1], %d" % KA_WS)
    a.i("s_load_dwordx2 s[10:11], s[0:1], %d" % KA_OUT)
    a.i("v_lshrrev_b32 v1, 6, v0")
    a.i("v_and_b32 v0, 63, v0")
    a.i("v_readfirstlane_b32 s3, v1")
    a.i("s_cmp_ge_u32 s2, %d" % K2_WGS)
    a.i("s_cbranch_scc1 k2_end")
    a.i("s_and_b32 s12, s2, 7")
    a.i("s_lshr_b32 s13, s2, 3")
    a.i("s_lshr_b32 s14, s13, 3")
    a.i("s_lshl_b32 s14, s14, 3")
    a.i("s_add_u32 s14, s14, s12")
    a.i("s_and_b32 s15, s13, 7")
    a.i("s_waitcnt lgkmcnt(0)")
    srd(a, 20, 4, 0, F * S * 2)
    srd(a, 24, 8, WS_G, SZ_G)
    srd(a, 28, 6, 0, S * 2)
    srd(a, 32, 8, WS_T, S * D * 2)
    srd(a, 36, 10, 0, S * D * 2)
    emit_gemm(a, "G2", F // 64, K2_SLOTS, S * 2, gemm2_epi(a, 28, 32, 36, 14, 15), 20, 24, 14, 15)
    a.label("k2_end")
    a.i("s_endpgm")


def descriptor(name, vgpr, sgpr=96):
    acc = (vgpr + 3) // 4 * 4
    return f""".amdhsa_kernel {name}
  .amdhsa_next_free_vgpr {vgpr}
  .amdhsa_next_free_sgpr {sgpr}
  .amdhsa_accum_offset {acc}
  .amdhsa_group_segment_fixed_size 0
  .amdhsa_kernarg_size 120
  .amdhsa_user_sgpr_count 2
  .amdhsa_user_sgpr_kernarg_segment_ptr 1
  .amdhsa_system_sgpr_workgroup_id_x 1
.end_amdhsa_kernel
"""


def build(kernels=("k0", "k1", "k2")):
    hdr = open("parallel_sum__ssm_conv_s4d__mixer_token_mlp__prompt.s.ref").read().split("\n")
    head = [l for l in hdr if l.startswith(";") and "@launch" not in l]
    launches = []
    if "k0" in kernels:
        launches.append(f"; @launch kernel=k0_kernel grid=({K0_LN_WGS+K0_KC_WGS},1,1) block=(256,1,1) lds={K0_LDS}")
    if "k1" in kernels:
        launches.append(f"; @launch kernel=k1_kernel grid=({K1_G_WGS+K1_C_WGS},1,1) block=(256,1,1) lds={K1_LDS}")
    if "k2" in kernels:
        launches.append(f"; @launch kernel=k2_kernel grid=({K2_WGS},1,1) block=(256,1,1) lds={K2_LDS}")
    a = Asm()
    a.raw('.amdgcn_target "amdgcn-amd-amdhsa--gfx950"')
    a.raw(".text")
    if "k0" in kernels:
        emit_k0(a)
    if "k1" in kernels:
        emit_k1(a)
    if "k2" in kernels:
        emit_k2(a)
    body, n = hazard_pass(a.text())
    out = "\n".join(head + launches) + "\n" + body
    out += '.section .rodata,"a"\n.p2align 6\n'
    if "k0" in kernels:
        out += descriptor("k0_kernel", 160)
    if "k1" in kernels:
        out += descriptor("k1_kernel", 128)
    if "k2" in kernels:
        out += descriptor("k2_kernel", 96)
    return out, n


if __name__ == "__main__":
    out, n = build()
    path = sys.argv[1] if len(sys.argv) > 1 else "k0.s"
    open(path, "w").write(out)
    print("wrote", path, "nops inserted:", n, "bytes:", len(out))
```

```python
import sys, os
sys.path.insert(0, os.path.dirname(__file__))
from asmlib import Asm, hazard_pass

S, D, F, N = 2048, 512, 1792, 128
MB = 1 << 20
WS_XC, WS_XNC, WS_HC, WS_G, WS_KF, WS_KS, WS_T = 0, 2 * MB, 4 * MB, 6 * MB, 8 * MB, 10 * MB, 11 * MB
SZ_ACT = S * D * 2
SZ_G = F * D * 2
LOG2E = 0x3fb8aa3b
INV2PI = 0x3e22f983

KA_X, KA_LAR, KA_AIM, KA_CR, KA_CI, KA_LDT, KA_DSK, KA_BX, KA_W1, KA_B1, KA_W2, KA_B2, KA_OUT, KA_DBG, KA_WS = \
    [8 * i for i in range(15)]


def srd(a, dst, ptr, off, size):
    if off:
        a.i(f"s_add_u32 s{dst}, s{ptr}, 0x{off:x}")
        a.i(f"s_addc_u32 s{dst+1}, s{ptr+1}, 0")
        a.i(f"s_and_b32 s{dst+1}, s{dst+1}, 0xffff")
    else:
        a.i(f"s_mov_b32 s{dst}, s{ptr}")
        a.i(f"s_and_b32 s{dst+1}, s{ptr+1}, 0xffff")
    a.i(f"s_mov_b32 s{dst+2}, 0x{size:x}")
    a.i(f"s_mov_b32 s{dst+3}, 0x00020000")


STAMP = os.environ.get("STAMP") == "1"
WS_STAMP = 14 * MB


def stamp(a, i):
    if STAMP:
        a.i(f"s_memrealtime s[{84+2*i}:{85+2*i}]")


def stamp_flush(a, n, wsptr, kidx):
    if not STAMP:
        return
    a.i("s_waitcnt lgkmcnt(0)")
    a.i(f"s_add_u32 s76, s{wsptr}, 0x{WS_STAMP + kidx * 65536:x}")
    a.i(f"s_addc_u32 s77, s{wsptr+1}, 0")
    a.i("s_and_b32 s77, s77, 0xffff")
    a.i("s_mov_b32 s78, 0x10000")
    a.i("s_mov_b32 s79, 0x00020000")
    a.i("s_lshl_b32 s80, s2, 6")
    a.i("s_lshl_b32 s81, s3, 4")
    a.i("v_mov_b32 v126, 0")
    a.i("s_cmp_lg_u32 s3, 0")
    a.i(f"s_cbranch_scc1 stamp_skip_{kidx}_{n}_{stamp_flush.cnt}")
    for i in range(n):
        a.i(f"v_mov_b32 v124, s{84+2*i}")
        a.i(f"v_mov_b32 v125, s{85+2*i}")
        a.i(f"buffer_store_dwordx2 v[124:125], v126, s[76:79], s80 offen offset:{8*i}")
    a.label(f"stamp_skip_{kidx}_{n}_{stamp_flush.cnt}")
    stamp_flush.cnt += 1


stamp_flush.cnt = 0


def dpp_sum(a, regs, op="v_add_f32"):
    steps = ["quad_perm:[1,0,3,2] row_mask:0xf bank_mask:0xf",
             "quad_perm:[2,3,0,1] row_mask:0xf bank_mask:0xf",
             "row_half_mirror row_mask:0xf bank_mask:0xf",
             "row_mirror row_mask:0xf bank_mask:0xf",
             "row_bcast:15 row_mask:0xa bank_mask:0xf",
             "row_bcast:31 row_mask:0xc bank_mask:0xf"]
    for st in steps:
        for r in regs:
            a.i(f"{op}_dpp v{r}, v{r}, v{r} {st}")


def bf16r(a, dst, src, tmp):
    a.i(f"v_cvt_pk_bf16_f32 v{tmp}, v{src}, v{src}")
    a.i(f"v_lshlrev_b32 v{dst}, 16, v{tmp}")


def bf16r_pair(a, d0, d1, s0, s1, tmp):
    a.i(f"v_cvt_pk_bf16_f32 v{tmp}, v{s0}, v{s1}")
    a.i(f"v_lshlrev_b32 v{d0}, 16, v{tmp}")
    a.i(f"v_and_b32 v{d1}, 0xffff0000, v{tmp}")


PF_WGS = 64


def emit_prefetch(a, wptr, rows, wrs, ntiles, tag):
    rpw = rows // 8
    nld = rpw // 8
    a.i("s_waitcnt lgkmcnt(0)")
    srd(a, 20, wptr, 0, rows * wrs)
    a.i("s_and_b32 s40, s2, 7")
    a.i("s_lshr_b32 s41, s2, 3")
    a.i("s_lshr_b32 s42, s41, 1")
    a.i("s_lshl_b32 s43, s42, 3")
    a.i("s_add_u32 s43, s43, s40")
    if ntiles != 32:
        a.i("s_cmp_lt_u32 s42, 3")
        a.i(f"s_cbranch_scc1 pf_map_{tag}")
        a.i("s_and_b32 s43, s40, 3")
        a.i("s_add_u32 s43, s43, 24")
        a.label(f"pf_map_{tag}")
    a.i("s_and_b32 s41, s41, 1")
    a.i("s_lshl_b32 s41, s41, 2")
    a.i("s_add_u32 s41, s41, s3")
    a.i(f"s_mul_i32 s41, s41, {rpw * wrs}")
    a.i("s_lshl_b32 s43, s43, 7")
    a.i("s_add_u32 s41, s41, s43")
    a.i("v_lshrrev_b32 v2, 3, v0")
    a.i(f"s_mov_b32 s42, {wrs}")
    a.i("v_mul_u32_u24 v2, s42, v2")
    a.i("v_and_b32 v3, 7, v0")
    a.i("v_lshlrev_b32 v3, 4, v3")
    a.i("v_add_u32 v2, v2, v3")
    for i in range(nld):
        a.i(f"buffer_load_dwordx4 v[{8+4*(i%16)}:{11+4*(i%16)}], v2, s[20:23], s41 offen")
        a.i(f"s_add_u32 s41, s41, {8 * wrs}")
        if i % 16 == 15:
            a.i("s_waitcnt vmcnt(8)")
    a.i("s_waitcnt vmcnt(0)")
    a.i("s_endpgm")


K0_LN_WGS = 64
K0_KC_WGS = 512
K0_LDS = 20480


def emit_k0(a):
    a.raw(".globl k0_kernel")
    a.raw(".p2align 8")
    a.raw(".type k0_kernel,@function")
    a.label("k0_kernel")
    a.i("s_load_dwordx2 s[4:5], s[0:1], %d" % KA_X)
    a.i("s_load_dwordx2 s[6:7], s[0:1], %d" % KA_LAR)
    a.i("s_load_dwordx2 s[8:9], s[0:1], %d" % KA_AIM)
    a.i("s_load_dwordx2 s[10:11], s[0:1], %d" % KA_CR)
    a.i("s_load_dwordx2 s[12:13], s[0:1], %d" % KA_CI)
    a.i("s_load_dwordx2 s[14:15], s[0:1], %d" % KA_LDT)
    a.i("s_load_dwordx2 s[16:17], s[0:1], %d" % KA_WS)
    a.i("v_lshrrev_b32 v1, 6, v0")
    a.i("v_and_b32 v0, 63, v0")
    a.i("v_readfirstlane_b32 s3, v1")
    a.i("s_cmp_ge_u32 s2, %d" % (PF_WGS + K0_LN_WGS + K0_KC_WGS))
    a.i("s_cbranch_scc1 k0_end")
    a.i("s_cmp_lt_u32 s2, %d" % PF_WGS)
    a.i("s_cbranch_scc1 k0_pf")
    a.i("s_sub_u32 s2, s2, %d" % PF_WGS)
    a.i("s_cmp_ge_u32 s2, %d" % K0_LN_WGS)
    a.i("s_cbranch_scc1 k0_kcomp")
    emit_ln(a)
    a.label("k0_kcomp")
    emit_kcomp(a)
    a.label("k0_pf")
    a.i("s_load_dwordx2 s[18:19], s[0:1], %d" % KA_W1)
    emit_prefetch(a, 18, S, F * 2, 28, "w1")
    a.label("k0_end")
    a.i("s_endpgm")


def emit_ln(a):
    a.c("---- LN role: one wave = 8 tokens x 512 channels, lane = 8 channels")
    stamp(a, 0)
    a.i("s_waitcnt lgkmcnt(0)")
    srd(a, 20, 4, 0, S * D * 2)
    srd(a, 24, 16, WS_XC, SZ_ACT)
    srd(a, 28, 16, WS_XNC, SZ_ACT)
    srd(a, 32, 16, WS_HC, SZ_ACT)
    a.i("s_lshl_b32 s36, s2, 2")
    a.i("s_add_u32 s36, s36, s3")
    a.i("s_lshl_b32 s37, s36, 13")
    a.i("s_add_u32 s38, s37, 4096")
    a.i("v_lshlrev_b32 v2, 4, v0")
    RAW = 8
    XF = 40
    for t in range(8):
        so = "s37" if t < 4 else "s38"
        a.i(f"buffer_load_dwordx4 v[{RAW+4*t}:{RAW+4*t+3}], v2, s[20:23], {so} offen offset:{(t%4)*1024}")
    a.i("v_mov_b32 v3, 0x3b000000")
    a.i("v_mov_b32 v4, 0x3727c5ac")
    a.i("v_lshlrev_b32 v5, 7, v0")
    a.i("s_waitcnt vmcnt(0)")
    stamp(a, 1)
    for t in range(8):
        for p in range(4):
            a.i(f"v_lshlrev_b32 v{XF+8*t+2*p}, 16, v{RAW+4*t+p}")
            a.i(f"v_and_b32 v{XF+8*t+2*p+1}, 0xffff0000, v{RAW+4*t+p}")

    def store_units(base, srdreg):
        for c in range(8):
            for q in range(4):
                a.i(f"v_cvt_pk_bf16_f32 v{RAW+4*(c%2)+q}, v{base+8*(2*q)+c}, v{base+8*(2*q+1)+c}")
            a.i(f"buffer_store_dwordx4 v[{RAW+4*(c%2)}:{RAW+4*(c%2)+3}], v5, s[{srdreg}:{srdreg+3}], s37 offen offset:{c*16}")

    store_units(XF, 24)

    SUM = 16
    MEAN = 24
    RS = 32
    TMP = 104
    DEV = 106

    def layernorm(src, dst):
        for t in range(8):
            b = src + 8 * t
            a.i(f"v_add_f32 v{SUM+t}, v{b}, v{b+1}")
            for c in range(2, 8):
                a.i(f"v_add_f32 v{SUM+t}, v{SUM+t}, v{b+c}")
        dpp_sum(a, [SUM + t for t in range(8)])
        for t in range(8):
            a.i(f"v_readlane_b32 s40, v{SUM+t}, 63")
            a.i(f"v_mul_f32 v{MEAN+t}, s40, v3")
        for t in range(8):
            b = src + 8 * t
            a.i(f"v_sub_f32 v{DEV}, v{b}, v{MEAN+t}")
            a.i(f"v_mul_f32 v{SUM+t}, v{DEV}, v{DEV}")
            for c in range(1, 8):
                a.i(f"v_sub_f32 v{DEV+(c%2)}, v{b+c}, v{MEAN+t}")
                a.i(f"v_fmac_f32 v{SUM+t}, v{DEV+(c%2)}, v{DEV+(c%2)}")
        dpp_sum(a, [SUM + t for t in range(8)])
        for t in range(8):
            a.i(f"v_readlane_b32 s40, v{SUM+t}, 63")
            a.i(f"v_mul_f32 v{TMP+1}, s40, v3")
            bf16r(a, MEAN + t, MEAN + t, TMP)
            bf16r(a, TMP + 1, TMP + 1, TMP)
            a.i(f"v_add_f32 v{TMP+1}, v{TMP+1}, v4")
            bf16r(a, TMP + 1, TMP + 1, TMP)
            a.i(f"v_sqrt_f32 v{TMP+1}, v{TMP+1}")
            bf16r(a, TMP + 1, TMP + 1, TMP)
            a.i(f"v_rcp_f32 v{RS+t}, v{TMP+1}")
        for t in range(8):
            b = src + 8 * t
            o = dst + 8 * t
            for p in range(4):
                a.i(f"v_sub_f32 v{DEV}, v{b+2*p}, v{MEAN+t}")
                a.i(f"v_sub_f32 v{DEV+1}, v{b+2*p+1}, v{MEAN+t}")
                bf16r_pair(a, DEV, DEV + 1, DEV, DEV + 1, TMP)
                a.i(f"v_mul_f32 v{DEV}, v{DEV}, v{RS+t}")
                a.i(f"v_mul_f32 v{DEV+1}, v{DEV+1}, v{RS+t}")
                bf16r_pair(a, o + 2 * p, o + 2 * p + 1, DEV, DEV + 1, TMP)

    stamp(a, 2)
    layernorm(XF, XF)
    store_units(XF, 28)
    stamp(a, 3)
    layernorm(XF, XF)
    store_units(XF, 32)
    stamp(a, 4)
    stamp_flush(a, 5, 16, 0)
    a.i("s_endpgm")


def emit_kcomp(a):
    a.c("---- KCOMP role: one WG = one channel d; wave w handles n in [32w, 32w+32)")
    stamp(a, 0)
    a.i(f"s_sub_u32 s40, s2, {K0_LN_WGS}")
    a.i("s_and_b32 s41, s40, 7")
    a.i("s_lshl_b32 s41, s41, 3")
    a.i("s_lshr_b32 s42, s40, 3")
    a.i("s_and_b32 s42, s42, 7")
    a.i("s_and_b32 s43, s40, 0x1c0")
    a.i("s_add_u32 s40, s43, s41")
    a.i("s_add_u32 s40, s40, s42")
    a.i("s_waitcnt lgkmcnt(0)")
    srd(a, 20, 6, 0, D * N * 2)
    srd(a, 24, 8, 0, D * N * 2)
    srd(a, 28, 10, 0, D * N * 2)
    srd(a, 32, 12, 0, D * N * 2)
    srd(a, 36, 14, 0, D * 2)
    srd(a, 44, 16, WS_KF, S * D * 2)
    srd(a, 48, 16, WS_KS, D * 4)
    a.i("s_lshl_b32 s41, s40, 8")
    a.i("s_lshl_b32 s42, s40, 1")
    a.i("v_lshrrev_b32 v2, 4, v0")
    a.i("v_lshlrev_b32 v3, 4, v2")
    a.i("s_lshl_b32 s43, s3, 6")
    a.i("v_add_u32 v3, s43, v3")
    a.i("v_lshlrev_b32 v4, 2, v0")
    a.i("v_mov_b32 v5, 0")
    a.i("buffer_load_dwordx4 v[8:11], v3, s[20:23], s41 offen")
    a.i("buffer_load_dwordx4 v[12:15], v3, s[24:27], s41 offen")
    a.i("buffer_load_dwordx4 v[16:19], v3, s[28:31], s41 offen")
    a.i("buffer_load_dwordx4 v[20:23], v3, s[32:35], s41 offen")
    a.i("buffer_load_dword v24, v4, s[28:31], s41 offen")
    a.i("buffer_load_dword v25, v4, s[32:35], s41 offen")
    a.i("buffer_load_ushort v26, v5, s[36:39], s42 offen")
    a.i("v_and_b32 v6, 15, v0")
    a.i("v_cvt_f32_u32 v7, v6")
    a.i("v_lshlrev_b32 v27, 4, v6")
    a.i("v_add_u32 v27, 1, v27")
    a.i("v_cvt_f32_u32 v27, v27")
    a.i(f"s_mov_b32 s52, 0x{LOG2E:x}")
    a.i(f"s_mov_b32 s53, 0x{INV2PI:x}")
    a.i("s_waitcnt vmcnt(0)")
    stamp(a, 1)
    a.i("v_lshlrev_b32 v26, 16, v26")
    a.i("v_mul_f32 v26, s52, v26")
    a.i("v_exp_f32 v26, v26")
    bf16r(a, 26, 26, 28)
    a.i("v_lshlrev_b32 v28, 16, v24")
    a.i("v_and_b32 v29, 0xffff0000, v24")
    a.i("v_lshlrev_b32 v30, 16, v25")
    a.i("v_and_b32 v31, 0xffff0000, v25")
    a.i("v_add_f32 v32, v28, v29")
    a.i("v_max_f32 v33, abs(v28), abs(v29)")
    a.i("v_max_f32 v34, abs(v30), abs(v31)")
    a.i("v_max_f32 v33, v33, v34")
    dpp_sum(a, [32])
    dpp_sum(a, [33], op="v_max_f32")
    a.i("v_readlane_b32 s54, v32, 63")
    a.i("v_readlane_b32 s55, v33, 63")
    a.i("v_mul_f32 v33, s55, v26")
    a.i("v_mul_f32 v32, s54, v26")
    a.i("v_add_f32 v32, v32, v32")
    a.i("v_lshrrev_b32 v34, 23, v33")
    a.i("v_and_b32 v34, 0xff, v34")
    a.i("v_max_u32 v34, 14, v34")
    a.i("v_min_u32 v34, 0xfd, v34")
    a.i("v_sub_u32 v35, 0x10b, v34")
    a.i("v_lshlrev_b32 v35, 23, v35")
    a.i("v_add_u32 v36, -13, v34")
    a.i("v_lshlrev_b32 v36, 23, v36")
    a.i("v_mul_f32 v37, v26, v35")
    A2, WR, CRS, CIS = 40, 48, 56, 64
    for q in range(8):
        rg = 8 + q // 2
        ex = "v_lshlrev_b32 v{d}, 16, v{s}" if q % 2 == 0 else "v_and_b32 v{d}, 0xffff0000, v{s}"
        a.i(ex.format(d=A2 + q, s=rg))
        a.i(ex.format(d=WR + q, s=rg + 4))
        a.i(ex.format(d=CRS + q, s=rg + 8))
        a.i(ex.format(d=CIS + q, s=rg + 12))
    for q in range(8):
        a.i(f"v_mul_f32 v{A2+q}, s52, v{A2+q}")
        a.i(f"v_exp_f32 v{A2+q}, v{A2+q}")
    for q in range(8):
        bf16r(a, A2 + q, A2 + q, 38)
        a.i(f"v_mul_f32 v{A2+q}, v{A2+q}, v26")
        a.i(f"v_mul_f32 v{A2+q}, s52, v{A2+q}")
        a.i(f"v_sub_f32 v{A2+q}, 0, v{A2+q}")
        a.i(f"v_mul_f32 v{WR+q}, v{WR+q}, v26")
        a.i(f"v_mul_f32 v{WR+q}, s53, v{WR+q}")
        a.i(f"v_mul_f32 v{CRS+q}, v{CRS+q}, v37")
        a.i(f"v_mul_f32 v{CIS+q}, v{CIS+q}, v37")
    FR = 72
    def frag(r, kind):
        return FR + 16 * r + 4 * kind
    T = 136
    for qp in range(4):
        st = {}
        for h in range(2):
            q = 2 * qp + h
            Fr, Fi, Pr, Pi = T + 8 * h, T + 8 * h + 1, T + 8 * h + 2, T + 8 * h + 3
            st[h] = (Fr, Fi, Pr, Pi)
            t0, t1, t2 = T + 16, T + 17, T + 18
            for (pos, xr, xi) in ((7, Fr, Fi), (27, Pr, Pi)):
                a.i(f"v_mul_f32 v{t0}, v{A2+q}, v{pos}")
                a.i(f"v_mul_f32 v{t1}, v{WR+q}, v{pos}")
                a.i(f"v_exp_f32 v{t0}, v{t0}")
                a.i(f"v_fract_f32 v{t1}, v{t1}")
                a.i(f"v_cos_f32 v{t2}, v{t1}")
                a.i(f"v_sin_f32 v{t1}, v{t1}")
                a.i(f"v_mul_f32 v{xr}, v{t0}, v{t2}")
                a.i(f"v_mul_f32 v{xi}, v{t0}, v{t1}")
        for r in range(4):
            for h in range(2):
                q = 2 * qp + h
                Fr, Fi, Pr, Pi = st[h]
                a.i(f"v_mul_f32 v{T+20+h}, v{CRS+q}, v{Pr}")
                a.i(f"v_fma_f32 v{T+20+h}, -v{CIS+q}, v{Pi}, v{T+20+h}")
                a.i(f"v_mul_f32 v{T+22+h}, v{CRS+q}, v{Pi}")
                a.i(f"v_fma_f32 v{T+22+h}, v{CIS+q}, v{Pr}, v{T+22+h}")
            a.i(f"v_cvt_pk_f16_f32 v{frag(r,0)+qp}, v{T+20}, v{T+21}")
            a.i(f"v_cvt_pk_f16_f32 v{frag(r,1)+qp}, -v{T+22}, -v{T+23}")
            a.i(f"v_cvt_pk_f16_f32 v{frag(r,2)+qp}, v{st[0][0]}, v{st[1][0]}")
            a.i(f"v_cvt_pk_f16_f32 v{frag(r,3)+qp}, v{st[0][1]}, v{st[1][1]}")
            if r < 3:
                for h in range(2):
                    for (xr, xi) in ((st[h][0], st[h][1]), (st[h][2], st[h][3])):
                        a.i(f"v_mul_f32 v{T+16}, v{xr}, v{xi}")
                        a.i(f"v_mul_f32 v{T+17}, v{xi}, v{xi}")
                        a.i(f"v_fma_f32 v{xr}, v{xr}, v{xr}, -v{T+17}")
                        a.i(f"v_add_f32 v{xi}, v{T+16}, v{T+16}")
    stamp(a, 2)
    for r in range(4):
        for j in range(4):
            a.i(f"v_mov_b32 v{8+4*r+j}, 0")
    for r in range(4):
        a.i(f"v_mfma_f32_16x16x32_f16 v[{8+4*r}:{11+4*r}], v[{frag(r,0)}:{frag(r,0)+3}], v[{frag(r,2)}:{frag(r,2)+3}], v[{8+4*r}:{11+4*r}]")
        a.i(f"v_mfma_f32_16x16x32_f16 v[{8+4*r}:{11+4*r}], v[{frag(r,1)}:{frag(r,1)+3}], v[{frag(r,3)}:{frag(r,3)+3}], v[{8+4*r}:{11+4*r}]")
    a.i("v_lshlrev_b32 v40, 8, v2")
    a.i("v_lshlrev_b32 v41, 2, v6")
    a.i("v_add_u32 v40, v40, v41")
    a.i("s_lshl_b32 s43, s3, 12")
    a.i("v_add_u32 v40, s43, v40")
    for r in range(4):
        for j in range(4):
            a.i(f"ds_write_b32 v40, v{8+4*r+j} offset:{r*1024+j*64}")
    a.i("s_waitcnt lgkmcnt(0)")
    a.i("s_barrier")
    a.i("s_lshl_b32 s43, s3, 8")
    a.i("v_lshlrev_b32 v41, 2, v0")
    a.i("v_add_u32 v41, s43, v41")
    KSLOT = 16384
    a.i("v_add_f32 v42, v36, v36")
    for r in range(4):
        for w in range(4):
            a.i(f"ds_read_b32 v{44+4*r+w}, v41 offset:{w*4096+r*1024}")
    a.i("s_waitcnt lgkmcnt(0)")
    for r in range(4):
        a.i(f"v_add_f32 v{60+r}, v{44+4*r}, v{45+4*r}")
        a.i(f"v_add_f32 v{64+r}, v{46+4*r}, v{47+4*r}")
        a.i(f"v_add_f32 v{60+r}, v{60+r}, v{64+r}")
        a.i(f"v_mul_f32 v{60+r}, v{60+r}, v42")
    a.i(f"ds_write_b32 v41, v60 offset:{KSLOT+4}")
    a.i("v_mov_b32 v68, v60")
    a.i("v_max_f32 v68, abs(v68), abs(v32)")
    a.i("s_cmp_lt_u32 s3, 2")
    a.i("s_cbranch_scc1 kc_lowhalf")
    for r in range(1, 4):
        a.i(f"ds_write_b32 v41, v{60+r} offset:{KSLOT+4+512*r}")
        a.i(f"v_max_f32 v68, v68, abs(v{60+r})")
    a.i("s_branch kc_join")
    a.label("kc_lowhalf")
    a.i("v_mov_b32 v69, %d" % KSLOT)
    a.i("ds_write_b32 v69, v32")
    a.label("kc_join")
    dpp_sum(a, [68], op="v_max_f32")
    a.i("v_readlane_b32 s54, v68, 63")
    a.i("v_mov_b32 v69, s54")
    a.i("s_lshl_b32 s43, s3, 2")
    a.i("v_mov_b32 v70, s43")
    a.i(f"ds_write_b32 v70, v69 offset:{KSLOT+3072}")
    a.i("s_waitcnt lgkmcnt(0)")
    a.i("s_barrier")
    a.i("v_mov_b32 v70, 0")
    a.i(f"ds_read_b128 v[72:75], v70 offset:{KSLOT+3072}")
    a.i("s_waitcnt lgkmcnt(0)")
    a.i("v_max_f32 v72, v72, v73")
    a.i("v_max_f32 v74, v74, v75")
    a.i("v_max_f32 v72, v72, v74")
    a.i("v_lshrrev_b32 v73, 23, v72")
    a.i("v_and_b32 v73, 0xff, v73")
    a.i("v_max_u32 v73, 14, v73")
    a.i("v_min_u32 v73, 0xfd, v73")
    a.i("v_sub_u32 v74, 0x10b, v73")
    a.i("v_lshlrev_b32 v74, 23, v74")
    a.i("v_add_u32 v75, -13, v73")
    a.i("v_lshlrev_b32 v75, 23, v75")
    a.i("s_cmp_lg_u32 s3, 0")
    a.i("s_cbranch_scc1 kc_noscale")
    a.i("v_mov_b32 v70, 0")
    a.i("s_lshl_b32 s43, s40, 2")
    a.i("buffer_store_dword v75, v70, s[48:51], s43 offen")
    a.label("kc_noscale")
    stamp(a, 3)
    a.i("s_lshl_b32 s43, s3, 6")
    a.i("v_add_u32 v76, s43, v0")
    a.i("v_lshrrev_b32 v77, 2, v76")
    a.i("v_lshlrev_b32 v77, 5, v77")
    a.i("v_and_b32 v78, 3, v76")
    a.i("v_lshlrev_b32 v78, 3, v78")
    a.i("v_sub_u32 v77, v77, v78")
    a.i("v_add_u32 v77, 31, v77")
    for q in range(8):
        jr, ur, sr_ = 80 + q, 88 + q, 96 + q
        a.i(f"v_add_u32 v{jr}, {-q}, v77")
        a.i(f"v_cvt_f32_u32 v{ur}, v{jr}")
        a.i(f"v_lshrrev_b32 v{sr_}, 16, v{ur}")
        a.i(f"v_and_b32 v{sr_}, 1, v{sr_}")
        a.i(f"v_add3_u32 v{ur}, v{ur}, v{sr_}, 0x7fff" if False else f"v_add_u32 v{ur}, v{ur}, v{sr_}")
        a.i(f"v_add_u32 v{ur}, 0x7fff, v{ur}")
        a.i(f"v_lshrrev_b32 v{ur}, 16, v{ur}")
        a.i(f"v_add_u32 v{ur}, {-(133*128)}, v{ur}")
        a.i(f"v_cmp_gt_u32 vcc, 128, v{jr}")
        a.i(f"v_cndmask_b32 v{ur}, v{ur}, v{jr}, vcc")
        a.i(f"v_lshlrev_b32 v{ur}, 2, v{ur}")
        a.i(f"ds_read_b32 v{sr_}, v{ur} offset:{KSLOT}")
    a.i("s_waitcnt lgkmcnt(0)")
    for q in range(8):
        a.i(f"v_mul_f32 v{96+q}, v{96+q}, v74")
    for qp in range(4):
        a.i(f"v_cvt_pk_f16_f32 v{104+qp}, v{96+2*qp}, v{97+2*qp}")
    a.i("v_lshlrev_b32 v78, 4, v76")
    a.i("s_lshl_b32 s43, s40, 12")
    a.i("buffer_store_dwordx4 v[104:107], v78, s[44:47], s43 offen")
    stamp(a, 4)
    stamp_flush(a, 5, 16, 0)
    a.i("s_endpgm")


GELU_C = 0xc01357a2
GELU_K = 0xbdd2d3e0


def emit_gemm(a, tag, nsteps, nslots, wrs, epi, sW, sAct, s_mt, s_dt):
    dist = nslots - 1
    a.c(f"---- GEMM role {tag}: nsteps={nsteps} nslots={nslots}")
    stamp(a, 0)
    a.i("s_and_b32 s60, s3, 1")
    a.i("s_lshr_b32 s61, s3, 1")
    a.i("v_lshrrev_b32 v2, 3, v0")
    a.i(f"v_mul_u32_u24 v2, {wrs}, v2" if wrs <= 64 else f"s_mov_b32 s62, {wrs}")
    if wrs > 64:
        a.i("v_mul_u32_u24 v2, s62, v2")
    a.i("v_lshrrev_b32 v3, 4, v0")
    a.i("v_and_b32 v3, 1, v3")
    a.i("v_lshlrev_b32 v3, 2, v3")
    a.i("v_and_b32 v4, 7, v0")
    a.i("v_xor_b32 v3, v3, v4")
    a.i("v_lshlrev_b32 v3, 4, v3")
    a.i("v_add_u32 v2, v2, v3")
    a.i("v_lshlrev_b32 v3, 4, v0")
    a.i(f"s_mul_i32 s62, s3, {16 * wrs}")
    a.i(f"s_lshl_b32 s63, s{s_mt}, 7")
    a.i("s_add_u32 s62, s62, s63")
    a.i(f"s_add_u32 s63, s62, {8 * wrs}")
    a.i("s_lshl_b32 s64, s3, 14")
    a.i(f"s_lshl_b32 s65, s{s_dt}, 10")
    a.i("s_add_u32 s64, s64, s65")
    a.i("s_add_u32 s65, s64, 8192")
    a.i("s_lshl_b32 s66, s3, 11")
    a.i("v_and_b32 v4, 15, v0")
    a.i("v_lshrrev_b32 v5, 2, v4")
    a.i("v_and_b32 v6, 3, v0")
    a.i("v_lshrrev_b32 v7, 5, v0")
    a.i("v_lshrrev_b32 v8, 4, v0")
    a.i("v_and_b32 v8, 1, v8")
    a.i("v_lshlrev_b32 v9, 3, v7")
    a.i("v_add_u32 v9, v9, v5")
    a.i("v_lshlrev_b32 v9, 3, v9")
    a.i("v_lshlrev_b32 v10, 1, v8")
    a.i("v_lshrrev_b32 v11, 1, v6")
    a.i("v_add_u32 v10, v10, v11")
    a.i("s_lshl_b32 s67, s60, 2")
    a.i("v_add_u32 v10, s67, v10")
    a.i("v_lshrrev_b32 v11, 1, v5")
    a.i("v_and_b32 v11, 1, v11")
    a.i("v_lshlrev_b32 v11, 2, v11")
    a.i("v_xor_b32 v10, v10, v11")
    a.i("v_add_u32 v9, v9, v10")
    a.i("v_lshlrev_b32 v9, 4, v9")
    a.i("v_and_b32 v10, 1, v6")
    a.i("v_lshlrev_b32 v10, 3, v10")
    a.i("v_add_u32 v4, v9, v10")
    a.i("v_lshlrev_b32 v5, 6, v7")
    a.i("v_and_b32 v6, 31, v0")
    a.i("v_add_u32 v5, v5, v6")
    a.i("s_lshl_b32 s67, s61, 5")
    a.i("v_add_u32 v5, s67, v5")
    a.i("v_lshlrev_b32 v5, 4, v5")
    a.i("v_add_u32 v5, 0x2000, v5")
    ACC, AF, BF = 16, 32, 48
    epi("pre")
    for j in range(16):
        a.i(f"v_mov_b32 v{ACC+j}, 0")

    def issue(stage):
        slot = stage % nslots
        base = slot * 16384
        a.i(f"s_add_u32 m0, s66, {base}")
        a.i(f"buffer_load_dwordx4 v2, s[{sW}:{sW+3}], s62 offen lds")
        a.i(f"s_add_u32 m0, s66, {base + 1024}")
        a.i(f"buffer_load_dwordx4 v2, s[{sW}:{sW+3}], s63 offen lds")
        a.i(f"s_add_u32 m0, s66, {base + 8192}")
        a.i(f"buffer_load_dwordx4 v3, s[{sAct}:{sAct+3}], s64 offen lds")
        a.i(f"s_add_u32 m0, s66, {base + 8192 + 1024}")
        a.i(f"buffer_load_dwordx4 v3, s[{sAct}:{sAct+3}], s65 offen lds")
        a.i(f"s_add_u32 s62, s62, {64 * wrs}")
        a.i(f"s_add_u32 s63, s63, {64 * wrs}")
        a.i("s_add_u32 s64, s64, 0x10000")
        a.i("s_add_u32 s65, s65, 0x10000")

    for st in range(min(dist, nsteps)):
        issue(st)
    for i in range(nsteps):
        if i in (1, nsteps // 2):
            stamp(a, 1 if i == 1 else 2)
        after = min(i + dist - 1, nsteps - 1) - i
        a.i(f"s_waitcnt vmcnt({4 * after})")
        a.i("s_barrier")
        if i + dist < nsteps:
            issue(i + dist)
        base = (i % nslots) * 16384
        for kk in range(4):
            a.i(f"ds_read_b64_tr_b16 v[{AF+4*kk}:{AF+4*kk+1}], v4 offset:{base + 2048*kk}")
            a.i(f"ds_read_b64_tr_b16 v[{AF+4*kk+2}:{AF+4*kk+3}], v4 offset:{base + 2048*kk + 512}")
            a.i(f"ds_read_b128 v[{BF+4*kk}:{BF+4*kk+3}], v5 offset:{base + 2048*kk}")
        for kk in range(4):
            a.i(f"s_waitcnt lgkmcnt({9 - 3*kk})")
            a.i(f"v_mfma_f32_32x32x16_bf16 v[{ACC}:{ACC+15}], v[{AF+4*kk}:{AF+4*kk+3}], v[{BF+4*kk}:{BF+4*kk+3}], v[{ACC}:{ACC+15}]")
    stamp(a, 3)
    epi("post")


def gemm1_epi(a, sB1, sG, s_mt, s_dt):
    ACC = 16
    def epi(phase):
        if phase == "pre":
            a.i("v_lshrrev_b32 v6, 5, v0")
            a.i("v_lshlrev_b32 v6, 3, v6")
            a.i("s_lshl_b32 s67, s60, 6")
            a.i("v_add_u32 v6, s67, v6")
            a.i(f"s_lshl_b32 s67, s{s_mt}, 7")
            for i in range(4):
                a.i(f"buffer_load_dwordx2 v[{64+2*i}:{65+2*i}], v6, s[{sB1}:{sB1+3}], s67 offen offset:{16*i}")
            return
        a.i("s_mov_b32 s68, 0x%x" % GELU_C)
        a.i("s_mov_b32 s69, 0x%x" % GELU_K)
        a.i("v_and_b32 v6, 31, v0")
        a.i("s_lshl_b32 s67, s61, 5")
        a.i("v_add_u32 v6, s67, v6")
        a.i("v_lshlrev_b32 v6, 4, v6")
        a.i("v_lshrrev_b32 v7, 5, v0")
        a.i("v_lshlrev_b32 v7, 3, v7")
        a.i("v_add_u32 v6, v6, v7")
        a.i("s_lshl_b32 s67, s60, 15")
        a.i("v_add_u32 v6, s67, v6")
        a.i(f"s_lshl_b32 s67, s{s_mt}, 16")
        a.i(f"s_lshl_b32 s70, s{s_dt}, 10")
        a.i("s_add_u32 s67, s67, s70")
        for i in range(4):
            for hp in range(2):
                r0, r1 = ACC + 4*i + 2*hp, ACC + 4*i + 2*hp + 1
                bb = 64 + 2*i + hp
                a.i(f"v_cvt_pk_bf16_f32 v8, v{r0}, v{r1}")
                a.i("v_lshlrev_b32 v9, 16, v8")
                a.i("v_and_b32 v10, 0xffff0000, v8")
                a.i(f"v_lshlrev_b32 v11, 16, v{bb}")
                a.i(f"v_and_b32 v12, 0xffff0000, v{bb}")
                a.i("v_add_f32 v9, v9, v11")
                a.i("v_add_f32 v10, v10, v12")
                a.i("v_cvt_pk_bf16_f32 v8, v9, v10")
                a.i("v_lshlrev_b32 v9, 16, v8")
                a.i("v_and_b32 v10, 0xffff0000, v8")
                for x in (9, 10):
                    a.i(f"v_mul_f32 v11, v{x}, v{x}")
                    a.i("v_mov_b32 v13, s68")
                    a.i("v_fmac_f32 v13, s69, v11")
                    a.i(f"v_mul_f32 v13, v13, v{x}")
                    a.i("v_exp_f32 v13, v13")
                    a.i("v_add_f32 v13, 1.0, v13")
                    a.i("v_rcp_f32 v13, v13")
                    a.i(f"v_mul_f32 v{x}, v{x}, v13")
                a.i(f"v_cvt_pk_bf16_f32 v{72+hp}, v9, v10")
            a.i(f"buffer_store_dwordx2 v[72:73], v6, s[{sG}:{sG+3}], s67 offen offset:{0}" if i == 0 else
                f"buffer_store_dwordx2 v[72:73], v6, s[{sG}:{sG+3}], s71 offen")
            a.i(f"s_add_u32 s71, s67, {8192*(i+1)}")
        stamp(a, 4)
        stamp_flush(a, 5, 8, 1)
        a.i("s_endpgm")
    return epi


def gemm2_epi(a, sB2, sT, sOut, s_mt, s_dt):
    ACC = 16
    def epi(phase):
        if phase == "pre":
            a.i("v_lshrrev_b32 v6, 5, v0")
            a.i("v_lshlrev_b32 v6, 3, v6")
            a.i("s_lshl_b32 s67, s60, 6")
            a.i("v_add_u32 v6, s67, v6")
            a.i(f"s_lshl_b32 s67, s{s_mt}, 7")
            for i in range(4):
                a.i(f"buffer_load_dwordx2 v[{64+2*i}:{65+2*i}], v6, s[{sB2}:{sB2+3}], s67 offen offset:{16*i}")
            a.i("v_and_b32 v7, 31, v0")
            a.i("s_lshl_b32 s70, s61, 5")
            a.i("v_add_u32 v7, s70, v7")
            a.i(f"s_lshl_b32 s70, s{s_dt}, 6")
            a.i("v_add_u32 v7, s70, v7")
            a.i("v_lshlrev_b32 v8, 12, v7")
            a.i("v_add_u32 v8, v8, v6")
            for i in range(4):
                a.i(f"buffer_load_dwordx2 v[{72+2*i}:{73+2*i}], v8, s[{sT}:{sT+3}], s67 offen offset:{16*i}")
            return
        a.i("v_lshrrev_b32 v6, 5, v0")
        a.i("v_lshlrev_b32 v6, 12, v6")
        a.i("v_lshlrev_b32 v8, 1, v7")
        a.i("v_add_u32 v6, v6, v8")
        a.i(f"s_lshl_b32 s67, s{s_mt}, 16")
        a.i("s_lshl_b32 s70, s60, 15")
        a.i("s_add_u32 s67, s67, s70")
        for i in range(4):
            for hp in range(2):
                r0, r1 = ACC + 4*i + 2*hp, ACC + 4*i + 2*hp + 1
                bb = 64 + 2*i + hp
                tt = 72 + 2*i + hp
                a.i(f"v_cvt_pk_bf16_f32 v8, v{r0}, v{r1}")
                a.i("v_lshlrev_b32 v9, 16, v8")
                a.i("v_and_b32 v10, 0xffff0000, v8")
                a.i(f"v_lshlrev_b32 v11, 16, v{bb}")
                a.i(f"v_and_b32 v12, 0xffff0000, v{bb}")
                a.i("v_add_f32 v9, v9, v11")
                a.i("v_add_f32 v10, v10, v12")
                a.i("v_cvt_pk_bf16_f32 v8, v9, v10")
                a.i("v_lshlrev_b32 v9, 16, v8")
                a.i("v_and_b32 v10, 0xffff0000, v8")
                a.i(f"v_lshlrev_b32 v11, 16, v{tt}")
                a.i(f"v_and_b32 v12, 0xffff0000, v{tt}")
                a.i("v_add_f32 v9, v11, v9")
                a.i("v_add_f32 v10, v12, v10")
                a.i(f"v_cvt_pk_bf16_f32 v{80+hp}, v9, v10")
            for hp in range(2):
                a.i(f"s_add_u32 s71, s67, {(8*i + 2*hp)*1024}")
                a.i(f"buffer_store_short v{80+hp}, v6, s[{sOut}:{sOut+3}], s71 offen")
                a.i(f"buffer_store_short_d16_hi v{80+hp}, v6, s[{sOut}:{sOut+3}], s71 offen offset:1024")
        stamp(a, 4)
        stamp_flush(a, 5, 8, 2)
        a.i("s_endpgm")
    return epi


K1_G_WGS = 224
K1_C_WGS = 512
K1_LDS = 49152
CV_PART, CV_U, CV_KNEG = 0, 0, 36864
CV_CS = 4160
CV_K0 = CV_KNEG + 31 * 80


def emit_k1(a):
    a.raw(".globl k1_kernel")
    a.raw(".p2align 8")
    a.raw(".type k1_kernel,@function")
    a.label("k1_kernel")
    a.i("s_load_dwordx2 s[4:5], s[0:1], %d" % KA_W1)
    a.i("s_load_dwordx2 s[6:7], s[0:1], %d" % KA_B1)
    a.i("s_load_dwordx2 s[8:9], s[0:1], %d" % KA_WS)
    a.i("s_load_dwordx2 s[10:11], s[0:1], %d" % KA_DSK)
    a.i("v_lshrrev_b32 v1, 6, v0")
    a.i("v_mov_b32 v127, v0")
    a.i("v_and_b32 v0, 63, v0")
    a.i("v_readfirstlane_b32 s3, v1")
    a.i("s_cmp_ge_u32 s2, %d" % (PF_WGS + K1_G_WGS + K1_C_WGS))
    a.i("s_cbranch_scc1 k1_end")
    a.i("s_cmp_lt_u32 s2, %d" % PF_WGS)
    a.i("s_cbranch_scc1 k1_pf")
    a.i("s_sub_u32 s2, s2, %d" % PF_WGS)
    a.i("s_cmp_ge_u32 s2, %d" % K1_G_WGS)
    a.i("s_cbranch_scc1 %s" % ("k1_end" if os.environ.get("K1_MODE") == "gemm" else "k1_conv"))
    if os.environ.get("K1_MODE") == "conv":
        a.i("s_branch k1_end")
    a.i("s_and_b32 s12, s2, 7")
    a.i("s_lshr_b32 s13, s2, 3")
    a.i("s_lshr_b32 s14, s13, 3")
    a.i("s_lshl_b32 s14, s14, 3")
    a.i("s_add_u32 s14, s14, s12")
    a.i("s_and_b32 s15, s13, 7")
    a.i("s_cmp_lt_u32 s13, 24")
    a.i("s_cbranch_scc1 k1_g_map")
    a.i("s_and_b32 s14, s12, 3")
    a.i("s_add_u32 s14, s14, 24")
    a.i("s_and_b32 s15, s12, 4")
    a.i("s_add_u32 s15, s15, s13")
    a.i("s_sub_u32 s15, s15, 24")
    a.label("k1_g_map")
    a.i("s_waitcnt lgkmcnt(0)")
    srd(a, 20, 4, 0, S * F * 2)
    srd(a, 24, 8, WS_HC, SZ_ACT)
    srd(a, 28, 6, 0, F * 2)
    srd(a, 32, 8, WS_G, SZ_G)
    emit_gemm(a, "G1", S // 64, 3, F * 2, gemm1_epi(a, 28, 32, 14, 15), 20, 24, 14, 15)
    a.label("k1_conv")
    emit_conv(a)
    a.label("k1_pf")
    a.i("s_load_dwordx2 s[18:19], s[0:1], %d" % KA_W2)
    emit_prefetch(a, 18, F, S * 2, 32, "w2")
    a.label("k1_end")
    a.i("s_endpgm")


def emit_conv(a):
    a.c("---- CONV role: one WG = one channel")
    stamp(a, 0)
    a.i(f"s_sub_u32 s40, s2, {K1_G_WGS}")
    a.i("s_and_b32 s41, s40, 7")
    a.i("s_lshl_b32 s41, s41, 3")
    a.i("s_lshr_b32 s42, s40, 3")
    a.i("s_and_b32 s42, s42, 7")
    a.i("s_and_b32 s43, s40, 0x1c0")
    a.i("s_add_u32 s40, s43, s41")
    a.i("s_add_u32 s40, s40, s42")
    a.i("s_waitcnt lgkmcnt(0)")
    srd(a, 20, 8, WS_XC, SZ_ACT)
    srd(a, 24, 8, WS_XNC, SZ_ACT)
    srd(a, 28, 8, WS_KF, S * D * 2)
    srd(a, 32, 8, WS_KS, D * 4)
    srd(a, 36, 10, 0, D * 2)
    srd(a, 44, 8, WS_T, S * D * 2)
    a.i("s_lshl_b32 s41, s40, 4")
    a.i("s_lshl_b32 s42, s40, 12")
    a.i("s_lshl_b32 s43, s40, 2")
    a.i("s_lshl_b32 s48, s40, 1")
    a.i("v_lshlrev_b32 v2, 13, v127")
    a.i("v_lshlrev_b32 v3, 4, v127")
    a.i("v_mov_b32 v4, 0")
    a.i("v_add_u32 v22, 0xffffe000, v2")
    a.i("buffer_load_dwordx4 v[8:11], v2, s[24:27], s41 offen")
    a.i("buffer_load_dwordx4 v[28:31], v22, s[24:27], s41 offen")
    a.i("buffer_load_dwordx4 v[12:15], v2, s[20:23], s41 offen")
    a.i("buffer_load_dwordx4 v[16:19], v3, s[28:31], s42 offen")
    a.i("buffer_load_dword v20, v4, s[32:35], s43 offen")
    a.i("buffer_load_ushort v21, v4, s[36:39], s48 offen")
    a.i("v_mov_b32 v24, 0")
    a.i("v_mov_b32 v25, 0")
    a.i("v_mov_b32 v26, 0")
    a.i("v_mov_b32 v27, 0")
    a.i("v_cmp_gt_u32 vcc, 155, v127")
    a.i("s_and_saveexec_b64 s[50:51], vcc")
    a.i(f"ds_write_b128 v3, v[24:27] offset:{CV_KNEG}")
    a.i("s_mov_b64 exec, s[50:51]")
    a.i("v_and_b32 v5, 7, v127")
    a.i(f"v_mul_u32_u24 v5, 0x{CV_CS:x}, v5")
    a.i("v_lshrrev_b32 v6, 3, v127")
    a.i("v_lshlrev_b32 v6, 4, v6")
    a.i("v_add_u32 v5, v5, v6")
    a.i("v_cmp_gt_u32 vcc, 24, v127")
    a.i("s_and_saveexec_b64 s[50:51], vcc")
    a.i(f"ds_write_b128 v5, v[24:27] offset:{CV_U}")
    a.i("s_mov_b64 exec, s[50:51]")
    a.i("v_lshrrev_b32 v5, 2, v127")
    a.i("v_mul_u32_u24 v5, 80, v5")
    a.i("v_and_b32 v6, 3, v127")
    a.i("v_lshlrev_b32 v6, 4, v6")
    a.i("v_add_u32 v5, v5, v6")
    a.i("v_add_u32 v23, 48, v3")
    a.i("s_waitcnt vmcnt(0)")
    stamp(a, 1)
    a.i(f"ds_write_b128 v5, v[16:19] offset:{CV_K0}")
    Z, ZO, TQ = 32, 40, 48

    def copies():
        for j in range(7):
            a.i(f"v_alignbyte_b32 v{ZO+j}, v{Z+j+1}, v{Z+j}, 2")
        for rho in range(8):
            src = (Z + rho // 2) if rho % 2 == 0 else (ZO + (rho - 1) // 2)
            if src % 2:
                for j in range(4):
                    a.i(f"v_mov_b32 v{TQ+4*(rho%4//2)+j}, v{src+j}")
                src = TQ + 4 * (rho % 4 // 2)
            a.i(f"ds_write_b128 v23, v[{src}:{src+3}] offset:{CV_U + rho*CV_CS}")
    for p in range(8):
        r = (28 + p) if p < 4 else (8 + p - 4)
        a.i(f"v_lshlrev_b32 v24, 16, v{r}")
        a.i(f"v_and_b32 v25, 0xffff0000, v{r}")
        a.i(f"v_cvt_pk_f16_f32 v{Z+p}, v24, v25")
    copies()
    a.i("v_cmp_eq_u32 vcc, 255, v127")
    a.i("s_and_saveexec_b64 s[50:51], vcc")
    a.i("s_cbranch_execz cv_nolast")
    for j in range(4):
        a.i(f"v_mov_b32 v{Z+j}, v{Z+4+j}")
        a.i(f"v_mov_b32 v{Z+4+j}, 0")
    a.i("v_add_u32 v23, 16, v23")
    copies()
    a.label("cv_nolast")
    a.i("s_mov_b64 exec, s[50:51]")
    a.i("s_waitcnt lgkmcnt(0)")
    a.i("s_barrier")
    stamp(a, 2)
    a.i("v_and_b32 v5, 31, v0")
    a.i("v_lshrrev_b32 v6, 5, v0")
    a.i("v_add_u32 v7, 1, v5")
    a.i("v_and_b32 v22, 7, v7")
    a.i(f"v_mul_u32_u24 v22, 0x{CV_CS:x}, v22")
    a.i("v_lshrrev_b32 v7, 3, v7")
    a.i("v_lshlrev_b32 v7, 4, v7")
    a.i("v_add_u32 v7, v7, v22")
    a.i("v_lshlrev_b32 v22, 4, v6")
    a.i("v_add_u32 v7, v7, v22")
    a.i("s_lshl_b32 s49, s3, 6")
    a.i("v_add_u32 v7, s49, v7")
    a.i("v_mul_u32_u24 v23, 80, v5")
    a.i("v_add_u32 v23, v23, v22")
    a.i("s_mul_i32 s49, s3, 80")
    a.i(f"s_sub_u32 s49, {CV_K0 - 4800}, s49")
    a.i("v_add_u32 v23, s49, v23")
    ACC = 32
    for j in range(32):
        a.i(f"v_mov_b32 v{ACC+j}, 0")
    SET = [64, 88]

    def reads(it):
        s0 = SET[it % 2]
        n = 0
        for kk in range(2):
            a.i(f"ds_read_b128 v[{s0+4*kk}:{s0+4*kk+3}], v7 offset:{256*it + 32*kk}")
            n += 1
            if it < 8:
                a.i(f"ds_read_b128 v[{s0+8+4*kk}:{s0+8+4*kk+3}], v23 offset:{320*(15-it) + 32*kk}")
                n += 1
            a.i(f"ds_read_b128 v[{s0+16+4*kk}:{s0+16+4*kk+3}], v23 offset:{320*(15-it) + 32*kk + 2560}")
            n += 1
        return n

    reads(0)
    for it in range(16):
        nn = reads(it + 1) if it + 1 < 16 else 0
        a.i(f"s_waitcnt lgkmcnt({nn})")
        s0 = SET[it % 2]
        for kk in range(2):
            if it < 8:
                a.i(f"v_mfma_f32_32x32x16_f16 v[{ACC}:{ACC+15}], v[{s0+4*kk}:{s0+4*kk+3}], v[{s0+8+4*kk}:{s0+8+4*kk+3}], v[{ACC}:{ACC+15}]")
            a.i(f"v_mfma_f32_32x32x16_f16 v[{ACC+16}:{ACC+31}], v[{s0+4*kk}:{s0+4*kk+3}], v[{s0+16+4*kk}:{s0+16+4*kk+3}], v[{ACC+16}:{ACC+31}]")
    stamp(a, 3)
    a.i("s_barrier")
    a.i("v_mul_u32_u24 v5, 144, v5")
    a.i("v_add_u32 v5, v5, v22")
    a.i("s_mul_i32 s49, s3, 9216")
    a.i("v_add_u32 v5, s49, v5")
    for T in range(2):
        for i in range(4):
            a.i(f"ds_write_b128 v5, v[{ACC+16*T+4*i}:{ACC+16*T+4*i+3}] offset:{4608*T + 32*i}")
    a.i("s_waitcnt lgkmcnt(0)")
    a.i("s_barrier")
    a.i("v_lshrrev_b32 v5, 2, v127")
    a.i("v_mul_u32_u24 v5, 144, v5")
    a.i("v_and_b32 v6, 3, v127")
    a.i("v_lshlrev_b32 v6, 5, v6")
    a.i("v_add_u32 v5, v5, v6")
    for w in range(4):
        a.i(f"ds_read_b128 v[{64+8*w}:{67+8*w}], v5 offset:{9216*w}")
        a.i(f"ds_read_b128 v[{68+8*w}:{71+8*w}], v5 offset:{9216*w + 16}")
    a.i("v_lshlrev_b32 v21, 16, v21")
    a.i("s_waitcnt lgkmcnt(0)")
    for e in range(8):
        a.i(f"v_add_f32 v{64+e}, v{64+e}, v{72+e}")
        a.i(f"v_add_f32 v{80+e}, v{80+e}, v{88+e}")
        a.i(f"v_add_f32 v{64+e}, v{64+e}, v{80+e}")
        a.i(f"v_mul_f32 v{64+e}, v{64+e}, v20")
    for p in range(4):
        e0, e1 = 64 + 2*p, 65 + 2*p
        a.i(f"v_cvt_pk_bf16_f32 v72, v{e0}, v{e1}")
        a.i("v_lshlrev_b32 v73, 16, v72")
        a.i("v_and_b32 v74, 0xffff0000, v72")
        a.i(f"v_lshlrev_b32 v75, 16, v{8+p}")
        a.i(f"v_and_b32 v76, 0xffff0000, v{8+p}")
        a.i("v_mul_f32 v75, v75, v21")
        a.i("v_mul_f32 v76, v76, v21")
        a.i("v_cvt_pk_bf16_f32 v72, v75, v76")
        a.i("v_lshlrev_b32 v75, 16, v72")
        a.i("v_and_b32 v76, 0xffff0000, v72")
        a.i("v_add_f32 v73, v73, v75")
        a.i("v_add_f32 v74, v74, v76")
        a.i("v_cvt_pk_bf16_f32 v72, v73, v74")
        a.i("v_lshlrev_b32 v73, 16, v72")
        a.i("v_and_b32 v74, 0xffff0000, v72")
        a.i(f"v_lshlrev_b32 v75, 16, v{12+p}")
        a.i(f"v_and_b32 v76, 0xffff0000, v{12+p}")
        a.i("v_add_f32 v73, v75, v73")
        a.i("v_add_f32 v74, v76, v74")
        a.i(f"v_cvt_pk_bf16_f32 v{80+p}, v73, v74")
    a.i("buffer_store_dwordx4 v[80:83], v3, s[44:47], s42 offen")
    stamp(a, 4)
    stamp_flush(a, 5, 8, 1)
    a.i("s_endpgm")


K2_WGS = 256
K2_SLOTS = int(os.environ.get("K2_SLOTS", "4"))
K2_LDS = K2_SLOTS * 16384


def emit_k2(a):
    a.raw(".globl k2_kernel")
    a.raw(".p2align 8")
    a.raw(".type k2_kernel,@function")
    a.label("k2_kernel")
    a.i("s_load_dwordx2 s[4:5], s[0:1], %d" % KA_W2)
    a.i("s_load_dwordx2 s[6:7], s[0:1], %d" % KA_B2)
    a.i("s_load_dwordx2 s[8:9], s[0:1], %d" % KA_WS)
    a.i("s_load_dwordx2 s[10:11], s[0:1], %d" % KA_OUT)
    a.i("v_lshrrev_b32 v1, 6, v0")
    a.i("v_and_b32 v0, 63, v0")
    a.i("v_readfirstlane_b32 s3, v1")
    a.i("s_cmp_ge_u32 s2, %d" % K2_WGS)
    a.i("s_cbranch_scc1 k2_end")
    a.i("s_and_b32 s12, s2, 7")
    a.i("s_lshr_b32 s13, s2, 3")
    a.i("s_lshr_b32 s14, s13, 3")
    a.i("s_lshl_b32 s14, s14, 3")
    a.i("s_add_u32 s14, s14, s12")
    a.i("s_and_b32 s15, s13, 7")
    a.i("s_waitcnt lgkmcnt(0)")
    srd(a, 20, 4, 0, F * S * 2)
    srd(a, 24, 8, WS_G, SZ_G)
    srd(a, 28, 6, 0, S * 2)
    srd(a, 32, 8, WS_T, S * D * 2)
    srd(a, 36, 10, 0, S * D * 2)
    emit_gemm(a, "G2", F // 64, K2_SLOTS, S * 2, gemm2_epi(a, 28, 32, 36, 14, 15), 20, 24, 14, 15)
    a.label("k2_end")
    a.i("s_endpgm")


def descriptor(name, vgpr, sgpr=96):
    acc = (vgpr + 3) // 4 * 4
    return f""".amdhsa_kernel {name}
  .amdhsa_next_free_vgpr {vgpr}
  .amdhsa_next_free_sgpr {sgpr}
  .amdhsa_accum_offset {acc}
  .amdhsa_group_segment_fixed_size 0
  .amdhsa_kernarg_size 120
  .amdhsa_user_sgpr_count 2
  .amdhsa_user_sgpr_kernarg_segment_ptr 1
  .amdhsa_system_sgpr_workgroup_id_x 1
.end_amdhsa_kernel
"""


def build(kernels=("k0", "k1", "k2")):
    hdr = open("parallel_sum__ssm_conv_s4d__mixer_token_mlp__prompt.s.ref").read().split("\n")
    head = [l for l in hdr if l.startswith(";") and "@launch" not in l]
    launches = []
    if "k0" in kernels:
        launches.append(f"; @launch kernel=k0_kernel grid=({PF_WGS+K0_LN_WGS+K0_KC_WGS},1,1) block=(256,1,1) lds={K0_LDS}")
    if "k1" in kernels:
        launches.append(f"; @launch kernel=k1_kernel grid=({PF_WGS+K1_G_WGS+K1_C_WGS},1,1) block=(256,1,1) lds={K1_LDS}")
    if "k2" in kernels:
        launches.append(f"; @launch kernel=k2_kernel grid=({K2_WGS},1,1) block=(256,1,1) lds={K2_LDS}")
    a = Asm()
    a.raw('.amdgcn_target "amdgcn-amd-amdhsa--gfx950"')
    a.raw(".text")
    if "k0" in kernels:
        emit_k0(a)
    if "k1" in kernels:
        emit_k1(a)
    if "k2" in kernels:
        emit_k2(a)
    body, n = hazard_pass(a.text())
    out = "\n".join(head + launches) + "\n" + body
    out += '.section .rodata,"a"\n.p2align 6\n'
    if "k0" in kernels:
        out += descriptor("k0_kernel", 160)
    if "k1" in kernels:
        out += descriptor("k1_kernel", 128)
    if "k2" in kernels:
        out += descriptor("k2_kernel", 128 if STAMP else 96)
    return out, n


if __name__ == "__main__":
    out, n = build()
    path = sys.argv[1] if len(sys.argv) > 1 else "k0.s"
    open(path, "w").write(out)
    print("wrote", path, "nops inserted:", n, "bytes:", len(out))
```
